```python
import torch

def _softmax(x, axis=-1):
    return torch.softmax(x, dim=axis)
def _gelu(x):
    return torch.nn.functional.gelu(x, approximate="tanh")
def _silu(x):
    return torch.nn.functional.silu(x)
def _sigmoid(x):
    return torch.sigmoid(x)
def _layernorm(x, axis=-1, eps=1e-5):
    m = x.mean(dim=axis, keepdim=True)
    v = x.var(dim=axis, keepdim=True, unbiased=False)
    return (x - m) / torch.sqrt(v + eps)
def _scatter_add(tgt, idx, src, axis=0):
    return tgt.clone().index_add_(axis, idx, src)
def _segment_sum(src, seg, n):
    out = torch.zeros((n,) + src.shape[1:], dtype=src.dtype)
    return out.index_add_(0, seg, src)
def _pad(x, pw):
    flat = tuple(v for pair in reversed(pw) for v in pair)
    return torch.nn.functional.pad(x, flat)

kernel_name = 'concat_heads__compressed_kv_cla__sliding_block_cached__decode'

def setup_inputs():

    _w = (lambda a: (lambda t: t.to(torch.bfloat16) if t.is_floating_point() else t)(torch.as_tensor(a)))
    def _A_setup():
        B, H, Sq, Sk, D, M = 2, 32, 1, 8192, 128, 512
        Dc = 4 * D
        return {
            "x": _w((lambda *s: torch.randn(*s, dtype=torch.bfloat16) * 3.2)(B, Sq, M)),
            "c_kv": _w((lambda *s: torch.randn(*s, dtype=torch.bfloat16) * 0.1)(B, Sk, Dc)),
            "w_q": _w((lambda *s: torch.randn(*s, dtype=torch.bfloat16) * 6.4)(M, H, D) * (M ** -0.5)),
            "w_uk": _w((lambda *s: torch.randn(*s, dtype=torch.bfloat16) * 6.4)(Dc, H, D) * (Dc ** -0.5)),
            "w_uv": _w((lambda *s: torch.randn(*s, dtype=torch.bfloat16) * 0.1)(Dc, H, D) * (Dc ** -0.5)),
            "w_o": _w((lambda *s: torch.randn(*s, dtype=torch.bfloat16) * 0.1)(H, D, M) * ((H * D) ** -0.5)),
        }
    _A_in = _A_setup()

    def _B_setup():
        B, Sq, D = 2, 1, 512
        Hq, Hkv, Sk, Dh = 32, 32, 8192, 128
        assert Hq % Hkv == 0, (Hq, Hkv)
        return {
            "x": _w((lambda *s: torch.randn(*s, dtype=torch.bfloat16) * 1.6)(B, Sq, D)),
            "k_cache": _w((lambda *s: torch.randn(*s, dtype=torch.bfloat16) * 1.6)(B, Hkv, Sk, Dh)),
            "v_cache": _w((lambda *s: torch.randn(*s, dtype=torch.bfloat16) * 0.05)(B, Hkv, Sk, Dh)),
            "wq": _w((lambda *s: torch.randn(*s, dtype=torch.bfloat16) * 1.6)(D, Hq * Dh) * (D ** -0.5)),
            "wo": _w((lambda *s: torch.randn(*s, dtype=torch.bfloat16) * 0.05)(Hq * Dh, D) * ((Hq * Dh) ** -0.5)),
        }
    _B_in = _B_setup()

    return {
        "A_x": _A_in["x"],
        "A_c_kv": _A_in["c_kv"],
        "A_w_q": _A_in["w_q"],
        "A_w_uk": _A_in["w_uk"],
        "A_w_uv": _A_in["w_uv"],
        "A_w_o": _A_in["w_o"],
        "B_x": _B_in["x"],
        "B_k_cache": _B_in["k_cache"],
        "B_v_cache": _B_in["v_cache"],
        "B_wq": _B_in["wq"],
        "B_wo": _B_in["wo"],
    }

def reference(A_x, A_c_kv, A_w_q, A_w_uk, A_w_uv, A_w_o, B_x, B_k_cache, B_v_cache, B_wq, B_wo):
    def _A_ref(x, c_kv, w_q, w_uk, w_uv, w_o):
        B, Sq, M = x.shape[0], x.shape[1], x.shape[2]
        Sk = c_kv.shape[1]
        H, D = w_q.shape[1], w_q.shape[2]
        q = torch.einsum("bqm,mhd->bhqd", x, w_q)
        k = torch.einsum("bkc,chd->bhkd", c_kv, w_uk)
        v = torch.einsum("bkc,chd->bhkd", c_kv, w_uv)
        scores = torch.einsum("bhqd,bhkd->bhqk", q, k) * (D ** -0.5)
        off = Sk - Sq
        qi = torch.arange(Sq)[:, None]
        kj = torch.arange(Sk)[None, :]
        cmask = kj <= (qi + off)
        scores = torch.where(cmask[None, None], scores, -1e9)
        p = _softmax(scores, axis=-1)
        ctx = torch.einsum("bhqk,bhkd->bhqd", p, v)
        return torch.einsum("bhqd,hdm->bqm", ctx, w_o)

    def _B_ref(x, k_cache, v_cache, wq, wo):
        B, Sq, D = x.shape
        Hq, Dh = 32, 128
        Hkv, Sk = k_cache.shape[1], k_cache.shape[2]
        W = min(4096, max(256, Sk // 4))
        rep = Hq // Hkv
        q = (lambda x, *d: x.permute(*d))((x @ wq).reshape(B, Sq, Hq, Dh), 0, 2, 1, 3)
        k = (lambda x, n, axis: torch.repeat_interleave(x, n, dim=axis))(k_cache[:, :, Sk - W:, :], rep, axis=1)
        v = (lambda x, n, axis: torch.repeat_interleave(x, n, dim=axis))(v_cache[:, :, Sk - W:, :], rep, axis=1)
        scores = torch.einsum("bhqd,bhkd->bhqk", q, k) * (Dh ** -0.5)
        p = _softmax(scores, axis=-1)
        o = torch.einsum("bhqk,bhkd->bhqd", p, v)
        return (lambda x, *d: x.permute(*d))(o, 0, 2, 1, 3).reshape(B, Sq, Hq * Dh) @ wo

    a = _A_ref(A_x, A_c_kv, A_w_q, A_w_uk, A_w_uv, A_w_o)
    b = _B_ref(B_x, B_k_cache, B_v_cache, B_wq, B_wo)
    return torch.concatenate([a, b], axis=-1)
```

```python
import sys
NAME = "concat_heads__compressed_kv_cla__sliding_block_cached__decode"
HEADER = open(f"cdna_kernels/{NAME}.s.ref").read().split("; Override launch geometry")[0]

LOG2E = 0x3FB8AA3B
SCALE = 0x3DB504F3
NEGBIG = 0xF149F2CA

WS_QABS = 0x0
WS_AML = 0x10000
WS_BP = 0x20000
WS_PO = 0x60000
WS_AO = 0x100000
WS_SIZE = 0x800000

class G:
    def __init__(self): self.L = []
    def e(self, s): self.L.append("    " + s)
    def lab(self, s): self.L.append(s + ":")
    def c(self, s): self.L.append("    ; " + s)
    def text(self): return "\n".join(self.L) + "\n"

def vr(a, n=1, k="v"):
    return f"{k}{a}" if n == 1 else f"{k}[{a}:{a+n-1}]"
def ar(a, n=1): return vr(a, n, "a")
def sr(a, n=1): return vr(a, n, "s")

def load_kernargs(g):
    g.e("s_load_dwordx16 s[16:31], s[0:1], 0")
    g.e("s_load_dwordx8 s[32:39], s[0:1], 64")
    g.e("s_load_dwordx4 s[40:43], s[0:1], 96")
P_AX, P_CKV, P_WQA, P_WUK, P_WUV, P_WOA, P_BX, P_K, P_V, P_WQB, P_WOB, P_OUT, P_DBG, P_WS = [16 + 2 * i for i in range(14)]

def srd(g, d, p, size, off_lo=None, off_hi=None):
    if off_lo is None:
        g.e(f"s_mov_b32 s{d}, s{p}")
        g.e(f"s_mov_b32 s{d+1}, s{p+1}")
    else:
        g.e(f"s_add_u32 s{d}, s{p}, {off_lo}")
        g.e(f"s_addc_u32 s{d+1}, s{p+1}, {off_hi if off_hi is not None else 0}")
    g.e(f"s_mov_b32 s{d+2}, {size}")
    g.e(f"s_mov_b32 s{d+3}, 0x00020000")

def round_scale(g, regs, tmp):
    for i in range(0, len(regs), 2):
        a, b = regs[i], regs[i + 1]
        g.e(f"v_cvt_pk_bf16_f32 v{tmp}, v{a}, v{b}")
        g.e(f"v_lshlrev_b32 v{a}, 16, v{tmp}")
        g.e(f"v_and_b32 v{b}, s46, v{tmp}")
        g.e(f"v_mul_f32 v{a}, s45, v{a}")
        g.e(f"v_mul_f32 v{b}, s45, v{b}")
        g.e(f"v_cvt_pk_bf16_f32 v{tmp}, v{a}, v{b}")
        g.e(f"v_lshlrev_b32 v{a}, 16, v{tmp}")
        g.e(f"v_and_b32 v{b}, s46, v{tmp}")

def gemv_rows_bf16x(g, nb, wbase, xbase, acc, t0, wait_fn):
    for i in range(32):
        wait_fn(i)
        for bb in range(nb):
            xp = xbase + 16 * bb + i // 2
            lo, hi = t0 + 2 * bb, t0 + 2 * bb + 1
            if i % 2 == 0:
                g.e(f"v_and_b32 v{lo}, 0xffff, v{xp}")
                g.e(f"v_lshlrev_b32 v{hi}, 16, v{xp}")
            else:
                g.e(f"v_lshrrev_b32 v{lo}, 16, v{xp}")
                g.e(f"v_and_b32 v{hi}, s46, v{xp}")
        for bb in range(nb):
            lo, hi = t0 + 2 * bb, t0 + 2 * bb + 1
            for d in range(4):
                w = wbase + 4 * i + d
                g.e(f"v_dot2c_f32_bf16 v{acc[bb] + 2*d}, v{w}, v{lo}")
                g.e(f"v_dot2c_f32_bf16 v{acc[bb] + 2*d + 1}, v{w}, v{hi}")

def k1(g):
    g.lab("k1_kernel")
    g.e("s_cmp_ge_u32 s2, 256")
    g.e("s_cbranch_scc1 K1_END")
    load_kernargs(g)
    g.e("s_and_b32 s3, s2, 7")
    g.e("s_lshr_b32 s4, s2, 3")
    g.e("v_lshrrev_b32 v1, 6, v0")
    g.e("v_and_b32 v2, 63, v0")
    g.e("v_readfirstlane_b32 s5, v1")
    g.e(f"s_mov_b32 s45, {SCALE:#x}")
    g.e("s_mov_b32 s46, 0xffff0000")
    g.e(f"s_mov_b32 s47, {LOG2E:#x}")
    g.e("v_and_b32 v3, 15, v2")
    g.e("v_lshrrev_b32 v4, 4, v2")
    g.e("s_waitcnt lgkmcnt(0)")
    srd(g, 64, P_WS, WS_SIZE)
    g.e("s_cmp_ge_u32 s4, 24")
    g.e("s_cbranch_scc1 K1_A")
    k1_b(g)
    g.e("s_endpgm")
    g.lab("K1_A")
    k1_a(g)
    g.lab("K1_END")
    g.e("s_endpgm")

def q_phase_loads(g, srd_x, srd_w, xoffs, s_h, wb=48, xb=16):
    g.e("s_lshl_b32 s6, s5, 7")
    g.e("v_lshlrev_b32 v5, 5, v4")
    g.e("v_add_u32 v5, s6, v5")
    g.e("v_lshlrev_b32 v6, 1, v5")
    n = 0
    for bb, xo in enumerate(xoffs):
        for q in range(4):
            g.e(f"buffer_load_dwordx4 v[{xb+16*bb+4*q}:{xb+3+16*bb+4*q}], v6, s[{srd_x}:{srd_x+3}], {xo} offen offset:{16*q}")
            n += 1
    g.e("v_lshlrev_b32 v7, 13, v5")
    g.e(f"s_lshl_b32 s6, {s_h}, 8")
    g.e("v_lshlrev_b32 v8, 4, v3")
    g.e("v_add3_u32 v7, v7, s6, v8")
    g.e("s_mov_b32 s6, 0")
    for i in range(32):
        g.e(f"buffer_load_dwordx4 v[{wb+4*i}:{wb+4*i+3}], v7, s[{srd_w}:{srd_w+3}], s6 offen")
        g.e("s_add_u32 s6, s6, 8192")
        n += 1
    return n
WB = 48

def k1_b(g):
    g.c("B path: s7=h s8=b s9=sp")
    g.e("s_mul_i32 s6, s4, 43")
    g.e("s_lshr_b32 s6, s6, 8")
    g.e("s_mul_i32 s7, s6, 6")
    g.e("s_sub_u32 s9, s4, s7")
    g.e("s_lshl_b32 s7, s3, 2")
    g.e("s_add_u32 s7, s7, s6")
    g.e("s_cmp_ge_u32 s9, 3")
    g.e("s_cselect_b32 s8, 1, 0")
    g.e("s_mul_i32 s6, s8, 3")
    g.e("s_sub_u32 s9, s9, s6")
    srd(g, 48, P_WQB, 4 << 20)
    srd(g, 60, P_BX, 2048)
    g.e("s_lshl_b32 s10, s8, 5")
    g.e("s_add_u32 s10, s10, s7")
    g.e("s_lshl_b32 s11, s10, 21")
    g.e("s_mul_i32 s12, s9, 688*256")
    g.e("s_add_u32 s11, s11, s12")
    g.e("s_add_u32 s11, s11, 6144*256")
    g.e("s_cmp_eq_u32 s9, 2")
    g.e("s_cselect_b32 s12, 42, 43")
    g.e("s_lshl_b32 s12, s12, 12")
    for d, p in ((52, P_K), (56, P_V)):
        g.e(f"s_add_u32 s{d}, s{p}, s11")
        g.e(f"s_addc_u32 s{d+1}, s{p+1}, 0")
        g.e(f"s_mov_b32 s{d+2}, s12")
        g.e(f"s_mov_b32 s{d+3}, 0x00020000")
    g.e("s_lshl_b32 s13, s8, 10")
    n = q_phase_loads(g, 60, 48, ["s13"], "s7", wb=32, xb=160)
    g.e("v_lshlrev_b32 v9, 8, v3")
    g.e("v_lshl_add_u32 v9, v4, 4, v9")
    g.e("s_lshl_b32 s6, s5, 12")
    for i in range(11):
        for j in range(4):
            g.e(f"buffer_load_dwordx4 a[{16*i+4*j}:{16*i+4*j+3}], v9, s[52:55], s6 offen offset:{64*j}")
            n += 1
        g.e("s_add_u32 s6, s6, 16384")
    g.e("s_lshl_b32 s6, s5, 12")
    g.e("s_add_u32 s6, s6, 40*4096")
    g.e("s_cmp_lt_u32 s6, s12")
    g.e(f"s_cselect_b32 s14, 0, {NEGBIG:#x}")
    ACC = 16
    for r in range(8): g.e(f"v_mov_b32 v{ACC+r}, 0")
    total = n
    def wait(i):
        need = total - (4 + i + 1)
        g.e(f"s_waitcnt vmcnt({min(63, need)})")
    gemv_rows_bf16x(g, 1, 32, 160, [ACC], 24, wait)
    g.e("s_lshl_b32 s6, s5, 11")
    g.e("v_lshlrev_b32 v10, 9, v4")
    g.e("v_lshl_add_u32 v10, v3, 5, v10")
    g.e("v_add_u32 v10, s6, v10")
    g.e("s_nop 1")
    g.e(f"ds_write_b128 v10, v[{ACC}:{ACC+3}]")
    g.e(f"ds_write_b128 v10, v[{ACC+4}:{ACC+7}] offset:16")
    g.e("v_lshlrev_b32 v11, 10, v4")
    g.e("v_lshl_add_u32 v11, v3, 4, v11")
    g.e("s_lshl_b32 s15, s5, 12")
    VT = [32 + 16 * i for i in range(11)]
    for i in range(11):
        for r in range(4):
            g.e(f"buffer_load_dwordx4 v[{VT[i]+4*r}:{VT[i]+4*r+3}], v11, s[56:59], s15 offen offset:{256*r}")
        g.e("s_add_u32 s15, s15, 16384")
    g.e("s_waitcnt lgkmcnt(0)")
    g.e("s_barrier")
    g.e("v_cmp_gt_u32 vcc, 128, v0")
    g.e("s_and_saveexec_b64 s[68:69], vcc")
    g.e("s_cbranch_execz K1B_Q1")
    g.e("v_lshlrev_b32 v10, 2, v0")
    for p in range(16):
        g.e(f"ds_read_b32 v{208+p}, v10 offset:{512*p}")
    g.e("s_waitcnt lgkmcnt(0)")
    for p in range(1, 16):
        g.e(f"v_add_f32 v208, v208, v{208+p}")
    g.e("v_cvt_pk_bf16_f32 v208, v208, v208")
    g.e("v_lshlrev_b32 v10, 1, v0")
    g.e("ds_write_b16 v10, v208 offset:8192")
    g.lab("K1B_Q1")
    g.e("s_mov_b64 exec, s[68:69]")
    g.e("s_waitcnt lgkmcnt(0)")
    g.e("s_barrier")
    g.e("v_lshlrev_b32 v10, 4, v4")
    QF = 176
    for j in range(4):
        g.e(f"ds_read_b128 a[{QF+4*j}:{QF+4*j+3}], v10 offset:{8192+64*j}")
    g.e("s_waitcnt lgkmcnt(0)")
    SC = 224 - 12
    SC = 208
    for i in range(11):
        g.e(f"s_waitcnt vmcnt({min(63, 44 + 4*(10-i))})")
        for j in range(4):
            c = "0" if j == 0 else f"v[{SC+4*i}:{SC+4*i+3}]"
            g.e(f"v_mfma_f32_16x16x32_bf16 v[{SC+4*i}:{SC+4*i+3}], a[{16*i+4*j}:{16*i+4*j+3}], a[{QF+4*j}:{QF+4*j+3}], {c}")
    g.e("s_nop 7")
    g.e("s_nop 1")
    round_scale(g, [SC + k for k in range(44)], 24)
    for r in range(4):
        g.e(f"v_add_f32 v{SC+40+r}, s14, v{SC+40+r}")
    g.e(f"v_max3_f32 v24, v{SC}, v{SC+1}, v{SC+2}")
    for k in range(3, 43, 2):
        g.e(f"v_max3_f32 v24, v24, v{SC+k}, v{SC+k+1}")
    g.e(f"v_max_f32 v24, v24, v{SC+43}")
    for sw in ("v_permlane16_swap_b32", "v_permlane32_swap_b32"):
        g.e("v_mov_b32 v25, v24")
        g.e("s_nop 1")
        g.e(f"{sw} v24, v25")
        g.e("s_nop 1")
        g.e("v_max_f32 v24, v24, v25")
    g.e("v_mul_f32 v26, s47, v24")
    g.e("v_sub_f32 v26, 0, v26")
    g.e("v_mov_b32 v27, 0")
    for r in range(8): g.e(f"v_mov_b32 v{ACC+r}, 0")
    for k in range(44):
        g.e(f"v_fma_f32 v{SC+k}, v{SC+k}, s47, v26")
        g.e(f"v_exp_f32 v{SC+k}, v{SC+k}")
    for i in range(11):
        g.e(f"s_waitcnt vmcnt({4*(10-i)})")
        for r in range(4):
            p = SC + 4 * i + r
            lo, hi = 28 + 2 * (r & 1), 29 + 2 * (r & 1)
            g.e(f"v_add_f32 v27, v27, v{p}")
            g.e(f"v_cvt_pk_bf16_f32 v{lo}, v{p}, 0")
            g.e(f"v_cvt_pk_bf16_f32 v{hi}, 0, v{p}")
            g.e("s_nop 1")
            for d in range(4):
                w = VT[i] + 4 * r + d
                g.e(f"v_dot2c_f32_bf16 v{ACC+2*d}, v{w}, v{lo}")
                g.e(f"v_dot2c_f32_bf16 v{ACC+2*d+1}, v{w}, v{hi}")
    g.e("s_nop 3")
    g.e("s_lshl_b32 s6, s5, 11")
    g.e("v_lshlrev_b32 v10, 9, v4")
    g.e("v_lshl_add_u32 v10, v3, 5, v10")
    g.e("v_add_u32 v10, s6, v10")
    g.e(f"ds_write_b128 v10, v[{ACC}:{ACC+3}]")
    g.e(f"ds_write_b128 v10, v[{ACC+4}:{ACC+7}] offset:16")
    g.e("s_lshl_b32 s6, s5, 5")
    g.e("v_lshlrev_b32 v10, 3, v4")
    g.e("v_add_u32 v10, s6, v10")
    g.e("v_mov_b32 v25, v27")
    g.e("ds_write_b64 v10, v[24:25] offset:8704")
    g.e("s_waitcnt lgkmcnt(0)")
    g.e("s_barrier")
    g.e("v_cmp_gt_u32 vcc, 128, v0")
    g.e("s_and_saveexec_b64 s[68:69], vcc")
    g.e("s_cbranch_execz K1B_DONE")
    g.e("v_mov_b32 v10, 0")
    for q in range(8):
        g.e(f"ds_read_b128 v[{48+4*q}:{51+4*q}], v10 offset:{8704+16*q}")
    g.e("v_lshlrev_b32 v10, 2, v0")
    for p in range(16):
        g.e(f"ds_read_b32 v{16+p}, v10 offset:{512*p}")
    g.e("s_waitcnt lgkmcnt(0)")
    g.e("v_max_f32 v40, v48, v56")
    g.e("v_max3_f32 v40, v40, v64, v72")
    for w in range(4):
        g.e(f"v_sub_f32 v{44+w}, v{48+8*w}, v40")
        g.e(f"v_mul_f32 v{44+w}, s47, v{44+w}")
        g.e(f"v_exp_f32 v{44+w}, v{44+w}")
    g.e("v_mov_b32 v41, 0")
    g.e("v_mov_b32 v42, 0")
    for w in range(4):
        g.e(f"v_add_f32 v{16+4*w}, v{16+4*w}, v{17+4*w}")
        g.e(f"v_add_f32 v{18+4*w}, v{18+4*w}, v{19+4*w}")
        g.e(f"v_add_f32 v{16+4*w}, v{16+4*w}, v{18+4*w}")
        g.e(f"v_fmac_f32 v42, v{16+4*w}, v{44+w}")
        g.e(f"v_add_f32 v{49+8*w}, v{49+8*w}, v{51+8*w}")
        g.e(f"v_add_f32 v{53+8*w}, v{53+8*w}, v{55+8*w}")
        g.e(f"v_add_f32 v{49+8*w}, v{49+8*w}, v{53+8*w}")
        g.e(f"v_fmac_f32 v41, v{49+8*w}, v{44+w}")
    g.e("s_mul_i32 s6, s10, 3")
    g.e("s_add_u32 s6, s6, s9")
    g.e("s_lshl_b32 s6, s6, 10")
    g.e(f"s_add_u32 s6, s6, {WS_BP}")
    g.e("v_lshlrev_b32 v10, 2, v0")
    g.e("buffer_store_dword v42, v10, s[64:67], s6 offen")
    g.e("v_cmp_eq_u32 vcc, 0, v0")
    g.e("s_and_b64 exec, exec, vcc")
    g.e("buffer_store_dwordx2 v[40:41], v10, s[64:67], s6 offen offset:512")
    g.lab("K1B_DONE")

LDS_CK = 0
LDS_QP = 0x20000
LDS_QB = 0x24000
LDS_MX = 0x24200
LDS_AL = 0x24400
LDS_LS = 0x24600
LDS_TOTAL = 0x24A00

def fsw(r): return ((r & 3) << 2) | ((r >> 2) & 3)

def k1_a(g):
    g.c("A path: s6=slot' s7=hp s8=chalf s9=a s10=b s11=split")
    g.e("s_sub_u32 s6, s4, 24")
    g.e("s_lshr_b32 s7, s6, 1")
    g.e("s_lshl_b32 s12, s3, 2")
    g.e("s_add_u32 s7, s7, s12")
    g.e("s_and_b32 s8, s6, 1")
    g.e("s_lshl_b32 s9, s3, 3")
    g.e("s_add_u32 s9, s9, s6")
    g.e("s_lshr_b32 s10, s9, 5")
    g.e("s_and_b32 s11, s9, 31")
    srd(g, 48, P_WQA, 4 << 20)
    srd(g, 52, P_WUK, 4 << 20)
    srd(g, 60, P_AX, 2048)
    g.e("s_lshl_b32 s12, s9, 18")
    srd(g, 56, P_CKV, 256 << 10, "s12", 0)
    srd(g, 72, P_DBG, 256)
    g.e("s_movk_i32 s13, 1024")
    n = q_phase_loads(g, 60, 48, ["0", "s13"], "s7")
    g.e("s_lshl_b32 s6, s8, 8")
    g.e("s_lshl_b32 s12, s5, 6")
    g.e("s_add_u32 s6, s6, s12")
    g.e("v_add_u32 v9, s6, v3")
    g.e("v_lshlrev_b32 v9, 13, v9")
    g.e("s_lshl_b32 s12, s7, 8")
    g.e("v_lshlrev_b32 v10, 4, v4")
    g.e("v_add3_u32 v9, v9, s12, v10")
    g.e("s_mov_b32 s12, 0")
    for t in range(4):
        for j in range(4):
            g.e(f"buffer_load_dwordx4 a[{128+16*t+4*j}:{128+16*t+4*j+3}], v9, s[52:55], s12 offen offset:{64*j}")
            n += 1
        g.e("s_add_u32 s12, s12, 16*8192")
    ACC0, ACC1 = 176, 184
    for r in range(16): g.e(f"v_mov_b32 v{ACC0+r}, 0")
    total = n
    def wait(i):
        g.e(f"s_waitcnt vmcnt({min(63, total - (8 + i + 1))})")
    gemv_rows_bf16x(g, 2, WB, 16, [ACC0, ACC1], 192, wait)
    g.e("s_lshl_b32 s12, s5, 11")
    g.e("v_lshlrev_b32 v10, 9, v4")
    g.e("v_lshl_add_u32 v10, v3, 5, v10")
    g.e("v_add_u32 v10, s12, v10")
    g.e("s_nop 1")
    for bb, A in enumerate((ACC0, ACC1)):
        g.e(f"ds_write_b128 v10, v[{A}:{A+3}] offset:{LDS_QP % 65536 + 8192*bb}") if False else None
    g.e(f"v_add_u32 v10, {LDS_QP:#x}, v10")
    for bb, A in enumerate((ACC0, ACC1)):
        g.e(f"ds_write_b128 v10, v[{A}:{A+3}] offset:{8192*bb}")
        g.e(f"ds_write_b128 v10, v[{A+4}:{A+7}] offset:{8192*bb+16}")
    g.e("s_waitcnt lgkmcnt(0)")
    g.e("s_barrier")
    g.e("v_and_b32 v10, 127, v0")
    g.e("v_lshlrev_b32 v10, 2, v10")
    g.e("v_lshrrev_b32 v11, 7, v0")
    g.e("v_lshl_add_u32 v10, v11, 13, v10")
    g.e(f"v_add_u32 v10, {LDS_QP:#x}, v10")
    for p in range(16):
        g.e(f"ds_read_b32 v{16+p}, v10 offset:{512*p}")
    g.e("s_waitcnt lgkmcnt(0)")
    for p in range(1, 16):
        g.e(f"v_add_f32 v16, v16, v{16+p}")
    g.e("v_cvt_pk_bf16_f32 v16, v16, v16")
    g.e("v_lshlrev_b32 v10, 1, v0")
    g.e(f"v_add_u32 v10, {LDS_QB:#x}, v10")
    g.e("ds_write_b16 v10, v16")
    g.e("s_waitcnt lgkmcnt(0)")
    g.e("s_barrier")
    g.e("v_and_b32 v10, 1, v2")
    g.e("v_lshlrev_b32 v10, 8, v10")
    g.e("v_lshl_add_u32 v10, v4, 4, v10")
    g.e(f"v_add_u32 v10, {LDS_QB:#x}, v10")
    QF = 16
    for j in range(4):
        g.e(f"ds_read_b128 v[{QF+4*j}:{QF+4*j+3}], v10 offset:{64*j}")
    g.e("s_waitcnt vmcnt(0) lgkmcnt(0)")
    D = 32
    for t in range(4):
        for j in range(4):
            c = "0" if j == 0 else f"v[{D+4*t}:{D+4*t+3}]"
            g.e(f"v_mfma_f32_16x16x32_bf16 v[{D+4*t}:{D+4*t+3}], a[{128+16*t+4*j}:{128+16*t+4*j+3}], v[{QF+4*j}:{QF+4*j+3}], {c}")
    g.e("v_lshlrev_b32 v10, 15, v3")
    g.e("s_lshl_b32 s12, s7, 10")
    g.e("s_lshl_b32 s13, s6, 1")
    g.e("s_add_u32 s12, s12, s13")
    g.e("v_lshlrev_b32 v11, 3, v4")
    g.e("v_add3_u32 v10, v10, s12, v11")
    g.e("s_nop 4")
    for t in range(4):
        g.e(f"v_cvt_pk_bf16_f32 v{D+4*t}, v{D+4*t}, v{D+4*t+1}")
        g.e(f"v_cvt_pk_bf16_f32 v{D+4*t+1}, v{D+4*t+2}, v{D+4*t+3}")
    g.e("v_cmp_gt_u32 vcc, 2, v3")
    g.e("s_and_saveexec_b64 s[68:69], vcc")
    for t in range(4):
        g.e(f"buffer_store_dwordx2 v[{D+4*t}:{D+4*t+1}], v10, s[64:67], 0 offen offset:{WS_QABS+32*t} sc1")
    g.e("s_mov_b64 exec, s[68:69]")
    g.e("s_waitcnt vmcnt(0)")
    g.e("s_barrier")
    g.e("s_cmp_lg_u32 s5, 0")
    g.e("s_cbranch_scc1 K1A_NOSIG")
    g.e("v_mov_b32 v10, 0")
    g.e("v_mov_b32 v11, 1")
    g.e("s_mov_b64 exec, 1")
    g.e("buffer_atomic_add v11, v10, s[72:75], 0 offen sc1")
    g.e("s_mov_b64 exec, -1")
    g.lab("K1A_NOSIG")
    g.e("v_lshlrev_b32 v12, 4, v2")
    g.e("s_lshl_b32 s12, s5, 15")
    for r in range(32):
        g.e(f"v_xor_b32 v10, {fsw(r & 15) << 4}, v12")
        g.e(f"s_add_u32 s13, s12, {LDS_CK + r*1024}")
        g.e("s_mov_b32 m0, s13")
        g.e(f"s_add_u32 s13, s12, {r*1024}")
        g.e("buffer_load_dwordx4 v10, s[56:59], s13 offen lds")
    g.e("s_add_u32 s12, s12, 0x20000")
    for r in range(32):
        g.e(f"buffer_load_dwordx4 a[{4*r}:{4*r+3}], v12, s[56:59], s12 offen")
        g.e("s_add_u32 s12, s12, 1024")
    g.e("s_cmp_lg_u32 s5, 0")
    g.e("s_cbranch_scc1 K1A_POLLED")
    g.e("v_mov_b32 v10, 0")
    g.lab("K1A_POLL")
    g.e("buffer_load_dword v11, v10, s[72:75], 0 offen sc1")
    g.e("s_waitcnt vmcnt(0)")
    g.e("v_readfirstlane_b32 s12, v11")
    g.e("s_cmp_ge_u32 s12, 64")
    g.e("s_cbranch_scc1 K1A_POLLED")
    g.e("s_sleep 2")
    g.e("s_branch K1A_POLL")
    g.lab("K1A_POLLED")
    g.e("s_barrier")
    g.e("v_and_b32 v5, 31, v2")
    g.e("v_lshrrev_b32 v6, 5, v2")
    g.e("v_lshlrev_b32 v10, 10, v5")
    g.e("v_lshl_add_u32 v10, v6, 4, v10")
    g.e("s_lshl_b32 s12, s10, 15")
    for j in range(32):
        g.e(f"buffer_load_dwordx4 a[{128+4*j}:{128+4*j+3}], v10, s[64:67], s12 offen offset:{WS_QABS+32*j} sc1")
    g.e("v_and_b32 v7, 3, v5")
    g.e("v_lshlrev_b32 v7, 2, v7")
    g.e("v_bfe_u32 v8, v5, 2, 2")
    g.e("v_or_b32 v7, v7, v8")
    g.e("s_lshl_b32 s12, s5, 15")
    g.e("v_lshlrev_b32 v8, 10, v5")
    g.e("v_add_u32 v8, s12, v8")
    QA = 16
    for jj in range(8):
        g.e(f"v_or_b32 v9, {2*jj}, v6")
        g.e("v_xor_b32 v9, v9, v7")
        g.e(f"v_lshl_add_u32 v{QA+jj}, v9, 4, v8")
    TA = 24
    g.e("v_bfe_u32 v9, v2, 2, 2")
    g.e("v_bfe_u32 v10, v2, 4, 1")
    g.e("v_bfe_u32 v11, v2, 1, 1")
    g.e("v_lshl_add_u32 v10, v10, 1, v11")
    g.e("v_and_b32 v11, 1, v2")
    g.e("v_lshlrev_b32 v11, 3, v11")
    g.e("s_lshl_b32 s12, s5, 8")
    g.e("v_add_u32 v11, s12, v11")
    g.e("v_lshl_add_u32 v13, v6, 2, v9")
    g.e("v_lshl_add_u32 v11, v13, 10, v11")
    for s in range(2):
        g.e(f"v_or_b32 v13, {2*s}, v6")
        g.e("v_lshl_add_u32 v13, v9, 2, v13")
        for ct in range(4):
            g.e(f"v_or_b32 v14, {4*ct}, v10")
            g.e("v_xor_b32 v14, v14, v13")
            g.e(f"v_lshl_add_u32 v{TA+4*s+ct}, v14, 4, v11")
    OA = 160
    SCR = 224
    PF = 240
    MRUN, LRUN = 248, 249
    g.e(f"v_mov_b32 v{MRUN}, {NEGBIG:#x}")
    g.e(f"v_mov_b32 v{LRUN}, 0")
    for r in range(64): g.e(f"v_mov_b32 v{OA+r}, 0")
    g.e("s_waitcnt vmcnt(0)")
    g.e("s_barrier")
    for blk in range(2):
        if blk == 1:
            g.e("s_lshl_b32 s12, s5, 15")
            for r in range(32):
                g.e(f"v_xor_b32 v10, {fsw(r & 15) << 4}, v12")
                g.e("v_add_u32 v10, s12, v10")
                g.e(f"ds_write_b128 v10, a[{4*r}:{4*r+3}] offset:{r*1024}")
            g.e("s_waitcnt lgkmcnt(0)")
            g.e("s_barrier")
        for j in range(32):
            a_, jj = j // 8, j % 8
            B = 32 + 4 * (j % 16)
            g.e(f"ds_read_b128 v[{B}:{B+3}], v{QA+jj} offset:{a_*256}")
            if j >= 8:
                jm = j - 8
                Bm = 32 + 4 * (jm % 16)
                g.e("s_waitcnt lgkmcnt(8)")
                c = "0" if jm == 0 else f"v[{SCR}:{SCR+15}]"
                g.e(f"v_mfma_f32_32x32x16_bf16 v[{SCR}:{SCR+15}], v[{Bm}:{Bm+3}], a[{128+4*jm}:{128+4*jm+3}], {c}")
        for jm in range(24, 32):
            Bm = 32 + 4 * (jm % 16)
            g.e(f"s_waitcnt lgkmcnt({31-jm})")
            g.e(f"v_mfma_f32_32x32x16_bf16 v[{SCR}:{SCR+15}], v[{Bm}:{Bm+3}], a[{128+4*jm}:{128+4*jm+3}], v[{SCR}:{SCR+15}]")
        g.e("s_nop 7"); g.e("s_nop 3")
        round_scale(g, [SCR + k for k in range(16)], 32)
        g.e(f"v_max3_f32 v32, v{SCR}, v{SCR+1}, v{SCR+2}")
        for k in range(3, 15, 2):
            g.e(f"v_max3_f32 v32, v32, v{SCR+k}, v{SCR+k+1}")
        g.e(f"v_max_f32 v32, v32, v{SCR+15}")
        g.e("v_mov_b32 v33, v32")
        g.e("s_nop 1")
        g.e("v_permlane32_swap_b32 v32, v33")
        g.e("s_nop 1")
        g.e("v_max_f32 v32, v32, v33")
        g.e("s_lshl_b32 s12, s5, 7")
        g.e("v_lshlrev_b32 v10, 2, v5")
        g.e(f"v_add_u32 v11, {LDS_MX:#x}, v10")
        g.e("v_add_u32 v10, s12, v11")
        g.e("ds_write_b32 v10, v32")
        g.e("s_waitcnt lgkmcnt(0)")
        g.e("s_barrier")
        for w in range(4):
            g.e(f"ds_read_b32 v{32+w}, v11 offset:{128*w}")
        g.e("s_waitcnt lgkmcnt(0)")
        g.e("v_max3_f32 v32, v32, v33, v34")
        g.e(f"v_max3_f32 v32, v32, v35, v{MRUN}")
        g.e(f"v_sub_f32 v33, v{MRUN}, v32")
        g.e("v_mul_f32 v33, s47, v33")
        g.e("v_exp_f32 v33, v33")
        g.e(f"v_mov_b32 v{MRUN}, v32")
        g.e("v_mul_f32 v34, s47, v32")
        g.e("v_sub_f32 v34, 0, v34")
        g.e(f"v_mul_f32 v{LRUN}, v{LRUN}, v33")
        for k in range(16):
            g.e(f"v_fma_f32 v{SCR+k}, v{SCR+k}, s47, v34")
            g.e(f"v_exp_f32 v{SCR+k}, v{SCR+k}")
        g.e("s_nop 0")
        for k in range(16):
            g.e(f"v_add_f32 v{LRUN}, v{LRUN}, v{SCR+k}")
        for k in range(8):
            g.e(f"v_cvt_pk_bf16_f32 v{PF+k}, v{SCR+2*k}, v{SCR+2*k+1}")
        g.e("s_lshl_b32 s12, s5, 11")
        g.e(f"s_add_u32 s12, s12, {LDS_QP:#x}")
        g.e("v_add_u32 v10, s12, v12")
        g.e(f"ds_write_b128 v10, v[{PF}:{PF+3}]")
        g.e(f"ds_write_b128 v10, v[{PF+4}:{PF+7}] offset:1024")
        if blk == 1:
            g.e("s_lshl_b32 s12, s5, 7")
            g.e(f"s_add_u32 s12, s12, {LDS_AL:#x}")
            g.e("v_lshl_add_u32 v10, v5, 2, s12")
            g.e("ds_write_b32 v10, v33")
            g.e("v_lshl_add_u32 v10, v6, 4, s12")
            g.e("s_waitcnt lgkmcnt(0)")
            for q in range(4):
                g.e(f"ds_read_b128 v[{36+4*q}:{39+4*q}], v10 offset:{32*q}")
            g.e("s_waitcnt lgkmcnt(0)")
            for ct in range(4):
                for r in range(16):
                    g.e(f"v_mul_f32 v{OA+16*ct+r}, v{OA+16*ct+r}, v{36+r}")
        g.e("s_waitcnt lgkmcnt(0)")
        g.e("s_barrier")
        g.e(f"v_add_u32 v10, {LDS_QP:#x}, v12")
        for kg in range(8):
            t, f = kg >> 1, kg & 1
            PA = 32 + 4 * (kg & 1)
            g.e(f"ds_read_b128 v[{PA}:{PA+3}], v10 offset:{kg*1024}")
            BB = 40 + 16 * (kg & 1)
            for ct in range(4):
                for s in range(2):
                    off = (32 * t + 16 * f + 8 * s) * 1024
                    g.e(f"v_add_u32 v{72+2*ct+s}, {off}, v{TA+4*s+ct}") if off >= 65536 else None
                    if off >= 65536:
                        g.e(f"ds_read_b64_tr_b16 v[{BB+4*ct+2*s}:{BB+4*ct+2*s+1}], v{72+2*ct+s}")
                    else:
                        g.e(f"ds_read_b64_tr_b16 v[{BB+4*ct+2*s}:{BB+4*ct+2*s+1}], v{TA+4*s+ct} offset:{off}")
            g.e("s_waitcnt lgkmcnt(0)")
            for ct in range(4):
                g.e(f"v_mfma_f32_32x32x16_bf16 v[{OA+16*ct}:{OA+16*ct+15}], v[{PA}:{PA+3}], v[{BB+4*ct}:{BB+4*ct+3}], v[{OA+16*ct}:{OA+16*ct+15}]")
        g.e("s_barrier")
    g.e("s_lshl_b32 s12, s5, 8")
    g.e(f"s_add_u32 s12, s12, {LDS_LS:#x}")
    g.e("v_lshl_add_u32 v10, v2, 2, s12")
    g.e(f"ds_write_b32 v10, v{LRUN}")
    g.e("s_waitcnt lgkmcnt(0)")
    g.e("s_barrier")
    g.e("s_lshl_b32 s12, s9, 16")
    g.e(f"s_add_u32 s12, s12, {WS_AO:#x}")
    g.e("s_lshl_b32 s13, s5, 9")
    g.e("s_add_u32 s12, s12, s13")
    g.e("v_lshlrev_b32 v10, 13, v6")
    g.e("v_lshl_add_u32 v10, v5, 2, v10")
    g.e("s_nop 7")
    for r in range(16):
        head = (r & 3) + 8 * (r >> 2)
        g.e(f"s_add_u32 s13, s12, {head*2048}")
        for ct in range(4):
            g.e(f"buffer_store_dword v{OA+16*ct+r}, v10, s[64:67], s13 offen offset:{128*ct}")
    g.e("s_cmp_lg_u32 s5, 0")
    g.e("s_cbranch_scc1 K1A_DONE")
    g.e("v_cmp_gt_u32 vcc, 32, v2")
    g.e("s_and_saveexec_b64 s[68:69], vcc")
    g.e("v_lshlrev_b32 v10, 2, v2")
    g.e(f"v_add_u32 v10, {LDS_LS:#x}, v10")
    for q in range(8):
        g.e(f"ds_read_b32 v{32+q}, v10 offset:{128*q}")
    g.e("s_waitcnt lgkmcnt(0)")
    for q in range(1, 8):
        g.e(f"v_add_f32 v32, v32, v{32+q}")
    g.e(f"v_mov_b32 v33, v32")
    g.e(f"v_mov_b32 v32, v{MRUN}")
    g.e("s_lshl_b32 s12, s9, 8")
    g.e(f"s_add_u32 s12, s12, {WS_AML:#x}")
    g.e("v_lshlrev_b32 v10, 3, v2")
    g.e("buffer_store_dwordx2 v[32:33], v10, s[64:67], s12 offen")
    g.lab("K1A_DONE")

def gemv2(g, srdw, s_rowbase_bytes, lds_x, s_po):
    ACC = 32
    for r in range(8): g.e(f"v_mov_b32 v{ACC+r}, 0")
    g.e("s_lshl_b32 s6, s5, 7")
    g.e(f"s_add_u32 s6, s6, {lds_x}")
    g.e("v_mov_b32 v10, s6")
    for q in range(8):
        g.e(f"ds_read_b128 v[{176+4*q}:{179+4*q}], v10 offset:{16*q}")
    g.e("s_waitcnt lgkmcnt(0)")
    for i in range(32):
        g.e(f"s_waitcnt vmcnt({31-i})")
        for d in range(4):
            w = WB + 4 * i + d
            g.e(f"v_lshlrev_b32 v{40+d}, 16, v{w}")
            g.e(f"v_and_b32 v{44+d}, s46, v{w}")
        for d in range(4):
            g.e(f"v_fmac_f32 v{ACC+2*d}, v{40+d}, v{176+i}")
            g.e(f"v_fmac_f32 v{ACC+2*d+1}, v{44+d}, v{176+i}")
    g.e("s_lshl_b32 s6, s5, 11")
    g.e("v_lshlrev_b32 v10, 5, v2")
    g.e("v_add_u32 v10, s6, v10")
    g.e(f"ds_write_b128 v10, v[{ACC}:{ACC+3}] offset:4096")
    g.e(f"ds_write_b128 v10, v[{ACC+4}:{ACC+7}] offset:4112")
    g.e("s_waitcnt lgkmcnt(0)")
    g.e("s_barrier")
    g.e("v_lshlrev_b32 v10, 3, v0")
    for w in range(4):
        g.e(f"ds_read_b64 v[{40+2*w}:{41+2*w}], v10 offset:{4096+2048*w}")
    g.e("s_waitcnt lgkmcnt(0)")
    for w in range(1, 4):
        g.e(f"v_add_f32 v40, v40, v{40+2*w}")
        g.e(f"v_add_f32 v41, v41, v{41+2*w}")
    g.e(f"buffer_store_dwordx2 v[40:41], v10, s[64:67], {s_po} offen")

def issue_gemv2_loads(g, srdw, s_rowbase):
    g.e("v_lshlrev_b32 v9, 4, v2")
    g.e("s_lshl_b32 s6, s5, 15")
    g.e(f"s_add_u32 s6, s6, {s_rowbase}")
    for i in range(32):
        g.e(f"buffer_load_dwordx4 v[{WB+4*i}:{WB+4*i+3}], v9, s[{srdw}:{srdw+3}], s6 offen")
        g.e("s_add_u32 s6, s6, 1024")

def k2(g):
    g.lab("k2_kernel")
    g.e("s_cmp_ge_u32 s2, 128")
    g.e("s_cbranch_scc1 K2_END")
    load_kernargs(g)
    g.e("v_lshrrev_b32 v1, 6, v0")
    g.e("v_and_b32 v2, 63, v0")
    g.e("v_readfirstlane_b32 s5, v1")
    g.e("s_mov_b32 s46, 0xffff0000")
    g.e(f"s_mov_b32 s47, {LOG2E:#x}")
    g.e("v_and_b32 v3, 15, v2")
    g.e("v_lshrrev_b32 v4, 4, v2")
    g.e("s_and_b32 s7, s2, 31")
    g.e("s_bfe_u32 s8, s2, 0x10005")
    g.e("s_lshl_b32 s14, s2, 11")
    g.e(f"s_add_u32 s14, s14, {WS_PO:#x}")
    g.e("s_waitcnt lgkmcnt(0)")
    srd(g, 64, P_WS, WS_SIZE)
    g.e("s_cmp_ge_u32 s2, 64")
    g.e("s_cbranch_scc1 K2_B")
    srd(g, 48, P_WUV, 4 << 20)
    srd(g, 52, P_WOA, 4 << 20)
    g.e("v_and_b32 v5, 31, v2")
    g.e("v_lshlrev_b32 v10, 8, v5")
    g.e("s_lshl_b32 s6, s8, 13")
    g.e("s_lshl_b32 s9, s7, 3")
    g.e("s_add_u32 s6, s6, s9")
    g.e(f"s_add_u32 s6, s6, {WS_AML:#x}")
    g.e("buffer_load_dwordx2 v[16:17], v10, s[64:67], s6 offen")
    g.e("v_lshlrev_b32 v11, 3, v0")
    g.e("s_lshl_b32 s6, s8, 21")
    g.e("s_lshl_b32 s9, s7, 11")
    g.e("s_add_u32 s6, s6, s9")
    g.e(f"s_add_u32 s6, s6, {WS_AO:#x}")
    for s in range(32):
        g.e(f"buffer_load_dwordx2 v[{176+2*s}:{177+2*s}], v11, s[64:67], s6 offen")
        g.e("s_add_u32 s6, s6, 65536")
    g.e("s_lshl_b32 s6, s5, 7")
    g.e("v_lshlrev_b32 v5, 5, v4")
    g.e("v_add_u32 v5, s6, v5")
    g.e("v_lshlrev_b32 v7, 13, v5")
    g.e("s_lshl_b32 s6, s7, 8")
    g.e("v_lshlrev_b32 v8, 4, v3")
    g.e("v_add3_u32 v7, v7, s6, v8")
    g.e("s_mov_b32 s6, 0")
    for i in range(32):
        g.e(f"buffer_load_dwordx4 v[{WB+4*i}:{WB+4*i+3}], v7, s[48:51], s6 offen")
        g.e("s_add_u32 s6, s6, 8192")
    g.e("s_waitcnt vmcnt(63)")
    g.e("s_waitcnt vmcnt(62)")
    g.e("v_mov_b32 v18, v16")
    for sh in (1, 2, 4, 8):
        g.e("s_nop 1")
        g.e(f"v_max_f32_dpp v18, v18, v18 row_ror:{sh} row_mask:0xf bank_mask:0xf")
    g.e("v_mov_b32 v19, v18")
    g.e("s_nop 1")
    g.e("v_permlane16_swap_b32 v18, v19")
    g.e("s_nop 1")
    g.e("v_max_f32 v18, v18, v19")
    g.e("v_sub_f32 v16, v16, v18")
    g.e("v_mul_f32 v16, s47, v16")
    g.e("v_exp_f32 v16, v16")
    g.e("s_nop 0")
    g.e("v_mul_f32 v17, v17, v16")
    for sh in (1, 2, 4, 8):
        g.e("s_nop 1")
        g.e(f"v_add_f32_dpp v17, v17, v17 row_ror:{sh} row_mask:0xf bank_mask:0xf")
    g.e("v_mov_b32 v19, v17")
    g.e("s_nop 1")
    g.e("v_permlane16_swap_b32 v17, v19")
    g.e("s_nop 1")
    g.e("v_add_f32 v17, v17, v19")
    g.e("v_rcp_f32 v17, v17")
    g.e("s_nop 0")
    g.e("v_mul_f32 v16, v16, v17")
    g.e("v_mov_b32 v20, 0")
    g.e("v_mov_b32 v21, 0")
    g.e("s_nop 0")
    for s in range(32):
        g.e(f"v_readlane_b32 s9, v16, {s}")
        g.e(f"s_waitcnt vmcnt({32 + 31 - s})")
        g.e("s_nop 0")
        g.e(f"v_fmac_f32 v20, s9, v{176+2*s}")
        g.e(f"v_fmac_f32 v21, s9, v{177+2*s}")
    g.e("ds_write_b64 v11, v[20:21]")
    g.e("s_waitcnt lgkmcnt(0)")
    g.e("s_barrier")
    g.e("v_lshlrev_b32 v10, 2, v5")
    for q in range(8):
        g.e(f"ds_read_b128 v[{176+4*q}:{179+4*q}], v10 offset:{16*q}")
    ACC = 32
    for r in range(8): g.e(f"v_mov_b32 v{ACC+r}, 0")
    g.e("s_waitcnt lgkmcnt(0)")
    for i in range(32):
        g.e(f"s_waitcnt vmcnt({31-i})")
        for d in range(4):
            w = WB + 4 * i + d
            g.e(f"v_lshlrev_b32 v{40+d}, 16, v{w}")
            g.e(f"v_and_b32 v{44+d}, s46, v{w}")
        for d in range(4):
            g.e(f"v_fmac_f32 v{ACC+2*d}, v{40+d}, v{176+i}")
            g.e(f"v_fmac_f32 v{ACC+2*d+1}, v{44+d}, v{176+i}")
    g.e("s_lshl_b32 s9, s7, 17")
    issue_gemv2_loads(g, 52, "s9")
    g.e("s_lshl_b32 s6, s5, 11")
    g.e("v_lshlrev_b32 v10, 9, v4")
    g.e("v_lshl_add_u32 v10, v3, 5, v10")
    g.e("v_add_u32 v10, s6, v10")
    g.e(f"ds_write_b128 v10, v[{ACC}:{ACC+3}] offset:4096")
    g.e(f"ds_write_b128 v10, v[{ACC+4}:{ACC+7}] offset:4112")
    g.e("s_waitcnt lgkmcnt(0)")
    g.e("s_barrier")
    g.e("v_cmp_gt_u32 vcc, 128, v0")
    g.e("s_and_saveexec_b64 s[68:69], vcc")
    g.e("s_cbranch_execz K2A_1")
    g.e("v_lshlrev_b32 v10, 2, v0")
    for p in range(16):
        g.e(f"ds_read_b32 v{16+p}, v10 offset:{4096+512*p}")
    g.e("s_waitcnt lgkmcnt(0)")
    for p in range(1, 16):
        g.e(f"v_add_f32 v16, v16, v{16+p}")
    g.e("v_cvt_pk_bf16_f32 v16, v16, v16")
    g.e("v_and_b32 v16, s46, v16")
    g.e("ds_write_b32 v10, v16 offset:2048")
    g.lab("K2A_1")
    g.e("s_mov_b64 exec, s[68:69]")
    g.e("s_waitcnt lgkmcnt(0)")
    g.e("s_barrier")
    gemv2(g, 52, None, 2048, "s14")
    g.e("s_endpgm")
    g.lab("K2_B")
    srd(g, 52, P_WOB, 4 << 20)
    g.e("s_lshl_b32 s9, s7, 17")
    issue_gemv2_loads(g, 52, "s9")
    g.e("v_cmp_gt_u32 vcc, 128, v0")
    g.e("s_and_saveexec_b64 s[68:69], vcc")
    g.e("s_cbranch_execz K2B_1")
    g.e("s_and_b32 s6, s2, 63")
    g.e("s_mul_i32 s6, s6, 3072")
    g.e(f"s_add_u32 s6, s6, {WS_BP:#x}")
    g.e("v_lshlrev_b32 v10, 2, v0")
    g.e("v_mov_b32 v11, 0")
    for sp in range(3):
        g.e(f"buffer_load_dword v{16+sp}, v10, s[64:67], s6 offen offset:{1024*sp}")
        g.e(f"buffer_load_dwordx2 v[{20+2*sp}:{21+2*sp}], v11, s[64:67], s6 offen offset:{1024*sp+512}")
    g.e("s_waitcnt vmcnt(0)")
    g.e("v_max3_f32 v26, v20, v22, v24")
    g.e("v_mov_b32 v27, 0")
    g.e("v_mov_b32 v28, 0")
    for sp in range(3):
        g.e(f"v_sub_f32 v{20+2*sp}, v{20+2*sp}, v26")
        g.e(f"v_mul_f32 v{20+2*sp}, s47, v{20+2*sp}")
        g.e(f"v_exp_f32 v{20+2*sp}, v{20+2*sp}")
        g.e("s_nop 0")
        g.e(f"v_fmac_f32 v27, v{20+2*sp}, v{21+2*sp}")
        g.e(f"v_fmac_f32 v28, v{20+2*sp}, v{16+sp}")
    g.e("v_rcp_f32 v27, v27")
    g.e("s_nop 0")
    g.e("v_mul_f32 v28, v28, v27")
    g.e("v_cvt_pk_bf16_f32 v28, v28, v28")
    g.e("v_and_b32 v28, s46, v28")
    g.e("ds_write_b32 v10, v28 offset:2048")
    g.lab("K2B_1")
    g.e("s_mov_b64 exec, s[68:69]")
    g.e("s_waitcnt lgkmcnt(0)")
    g.e("s_barrier")
    gemv2(g, 52, None, 2048, "s14")
    g.lab("K2_END")
    g.e("s_endpgm")

def k3(g):
    g.lab("k3_kernel")
    g.e("s_cmp_ge_u32 s2, 8")
    g.e("s_cbranch_scc1 K3_END")
    load_kernargs(g)
    g.e("s_waitcnt lgkmcnt(0)")
    srd(g, 64, P_WS, WS_SIZE)
    srd(g, 48, P_OUT, 4096)
    g.e("s_lshr_b32 s6, s2, 2")
    g.e("s_bfe_u32 s7, s2, 0x10001")
    g.e("s_and_b32 s8, s2, 1")
    g.e("s_lshl_b32 s7, s7, 1")
    g.e("s_add_u32 s7, s7, s6")
    g.e("s_lshl_b32 s7, s7, 16")
    g.e("s_lshl_b32 s8, s8, 10")
    g.e("s_add_u32 s7, s7, s8")
    g.e(f"s_add_u32 s7, s7, {WS_PO:#x}")
    g.e("v_lshlrev_b32 v1, 2, v0")
    for h in range(32):
        g.e(f"buffer_load_dword v{16+h}, v1, s[64:67], s7 offen")
        g.e("s_add_u32 s7, s7, 2048")
    g.e("s_waitcnt vmcnt(0)")
    for h in range(1, 32):
        g.e(f"v_add_f32 v16, v16, v{16+h}")
    g.e("v_cvt_pk_bf16_f32 v16, v16, v16")
    g.e("s_lshl_b32 s6, s2, 9")
    g.e("v_lshlrev_b32 v1, 1, v0")
    g.e("buffer_store_short v16, v1, s[48:51], s6 offen")
    g.lab("K3_END")
    g.e("s_endpgm")

def desc(name, vg, acc):
    return f""".amdhsa_kernel {name}
  .amdhsa_next_free_vgpr {vg}
  .amdhsa_next_free_sgpr 102
  .amdhsa_accum_offset {acc}
  .amdhsa_group_segment_fixed_size 0
  .amdhsa_kernarg_size 112
  .amdhsa_user_sgpr_count 2
  .amdhsa_user_sgpr_kernarg_segment_ptr 1
  .amdhsa_system_sgpr_workgroup_id_x 1
.end_amdhsa_kernel
"""

def main():
    out = HEADER
    out += f"; @launch kernel=k1_kernel grid=(256,1,1) block=(256,1,1) lds={LDS_TOTAL}\n"
    out += "; @launch kernel=k2_kernel grid=(128,1,1) block=(256,1,1) lds=16384\n"
    out += "; @launch kernel=k3_kernel grid=(8,1,1) block=(256,1,1) lds=0\n"
    out += '.amdgcn_target "amdgcn-amd-amdhsa--gfx950"\n.text\n'
    for nm, fn in (("k1_kernel", k1), ("k2_kernel", k2), ("k3_kernel", k3)):
        g = G(); fn(g)
        out += f".globl {nm}\n.p2align 8\n.type {nm},@function\n" + g.text()
    out += '.section .rodata,"a"\n.p2align 6\n'
    out += desc("k1_kernel", 512, 256) + ".p2align 6\n" + desc("k2_kernel", 256, 256) + ".p2align 6\n" + desc("k3_kernel", 64, 64)
    dst = sys.argv[1] if len(sys.argv) > 1 else f"cdna_kernels/{NAME}.s"
    open(dst, "w").write(out)
    print("wrote", dst, len(out))
main()
```

```python
import sys
NAME = "concat_heads__compressed_kv_cla__sliding_block_cached__decode"
HEADER = open(f"cdna_kernels/{NAME}.s.ref").read().split("; Override launch geometry")[0]

LOG2E = 0x3FB8AA3B
SCALE = 0x3DB504F3
NEGBIG = 0xF149F2CA

WS_QABS = 0x0
WS_AML = 0x10000
WS_BP = 0x20000
WS_PO = 0x60000
WS_AO = 0x100000
WS_SIZE = 0x800000

class G:
    def __init__(self): self.L = []
    def e(self, s): self.L.append("    " + s)
    def lab(self, s): self.L.append(s + ":")
    def c(self, s): self.L.append("    ; " + s)
    def text(self): return "\n".join(self.L) + "\n"

def vr(a, n=1, k="v"):
    return f"{k}{a}" if n == 1 else f"{k}[{a}:{a+n-1}]"
def ar(a, n=1): return vr(a, n, "a")
def sr(a, n=1): return vr(a, n, "s")

import os
STAMPS = os.environ.get("STAMPS", "0") == "1"
NT = " nt" if os.environ.get("NT", "1") == "1" else ""
WS_TS = 0x700000
_sid = [0]
def stamp(g, idx):
    if not STAMPS: return
    _sid[0] += 1
    L = f"ST_{_sid[0]}"
    g.e("s_cmp_lg_u32 s5, 0")
    g.e(f"s_cbranch_scc1 {L}")
    g.e("s_memrealtime s[90:91]")
    g.e("s_waitcnt lgkmcnt(0)")
    g.e("v_mov_b32 v14, s90")
    g.e("v_mov_b32 v15, s91")
    g.e("s_lshl_b32 s92, s2, 7")
    g.e(f"s_add_u32 s92, s92, {WS_TS + 8*idx}")
    g.e("buffer_store_dwordx2 v[14:15], off, s[64:67], s92")
    g.lab(L)

def load_kernargs(g):
    g.e("s_load_dwordx16 s[16:31], s[0:1], 0")
    g.e("s_load_dwordx8 s[32:39], s[0:1], 64")
    g.e("s_load_dwordx4 s[40:43], s[0:1], 96")
P_AX, P_CKV, P_WQA, P_WUK, P_WUV, P_WOA, P_BX, P_K, P_V, P_WQB, P_WOB, P_OUT, P_DBG, P_WS = [16 + 2 * i for i in range(14)]

def srd(g, d, p, size, off_lo=None, off_hi=None):
    if off_lo is None:
        g.e(f"s_mov_b32 s{d}, s{p}")
        g.e(f"s_mov_b32 s{d+1}, s{p+1}")
    else:
        g.e(f"s_add_u32 s{d}, s{p}, {off_lo}")
        g.e(f"s_addc_u32 s{d+1}, s{p+1}, {off_hi if off_hi is not None else 0}")
    g.e(f"s_mov_b32 s{d+2}, {size}")
    g.e(f"s_mov_b32 s{d+3}, 0x00020000")

def round_scale(g, regs, tmp):
    for i in range(0, len(regs), 2):
        a, b = regs[i], regs[i + 1]
        g.e(f"v_cvt_pk_bf16_f32 v{tmp}, v{a}, v{b}")
        g.e(f"v_lshlrev_b32 v{a}, 16, v{tmp}")
        g.e(f"v_and_b32 v{b}, s46, v{tmp}")
        g.e(f"v_mul_f32 v{a}, s45, v{a}")
        g.e(f"v_mul_f32 v{b}, s45, v{b}")
        g.e(f"v_cvt_pk_bf16_f32 v{tmp}, v{a}, v{b}")
        g.e(f"v_lshlrev_b32 v{a}, 16, v{tmp}")
        g.e(f"v_and_b32 v{b}, s46, v{tmp}")

def gemv_rows_bf16x(g, nb, wbase, xbase, acc, t0, wait_fn):
    for i in range(32):
        wait_fn(i)
        for bb in range(nb):
            xp = xbase + 16 * bb + i // 2
            lo, hi = t0 + 2 * bb, t0 + 2 * bb + 1
            if i % 2 == 0:
                g.e(f"v_and_b32 v{lo}, 0xffff, v{xp}")
                g.e(f"v_lshlrev_b32 v{hi}, 16, v{xp}")
            else:
                g.e(f"v_lshrrev_b32 v{lo}, 16, v{xp}")
                g.e(f"v_and_b32 v{hi}, s46, v{xp}")
        for bb in range(nb):
            lo, hi = t0 + 2 * bb, t0 + 2 * bb + 1
            for d in range(4):
                w = wbase + 4 * i + d
                g.e(f"v_dot2c_f32_bf16 v{acc[bb] + 2*d}, v{w}, v{lo}")
                g.e(f"v_dot2c_f32_bf16 v{acc[bb] + 2*d + 1}, v{w}, v{hi}")

def k1(g):
    g.lab("k1_kernel")
    g.e("s_cmp_ge_u32 s2, 256")
    g.e("s_cbranch_scc1 K1_END")
    load_kernargs(g)
    g.e("s_and_b32 s3, s2, 7")
    g.e("s_lshr_b32 s4, s2, 3")
    g.e("v_lshrrev_b32 v1, 6, v0")
    g.e("v_and_b32 v2, 63, v0")
    g.e("v_readfirstlane_b32 s5, v1")
    g.e(f"s_mov_b32 s45, {SCALE:#x}")
    g.e("s_mov_b32 s46, 0xffff0000")
    g.e(f"s_mov_b32 s47, {LOG2E:#x}")
    g.e("v_and_b32 v3, 15, v2")
    g.e("v_lshrrev_b32 v4, 4, v2")
    g.e("s_waitcnt lgkmcnt(0)")
    srd(g, 64, P_WS, WS_SIZE)
    stamp(g, 0)
    g.e("s_cmp_ge_u32 s4, 24")
    g.e("s_cbranch_scc1 K1_A")
    k1_b(g)
    g.e("s_endpgm")
    g.lab("K1_A")
    k1_a(g)
    g.lab("K1_END")
    g.e("s_endpgm")

def q_phase_loads(g, srd_x, srd_w, xoffs, s_h, wb=48, xb=16):
    g.e("s_lshl_b32 s6, s5, 7")
    g.e("v_lshlrev_b32 v5, 5, v4")
    g.e("v_add_u32 v5, s6, v5")
    g.e("v_lshlrev_b32 v6, 1, v5")
    n = 0
    for bb, xo in enumerate(xoffs):
        for q in range(4):
            g.e(f"buffer_load_dwordx4 v[{xb+16*bb+4*q}:{xb+3+16*bb+4*q}], v6, s[{srd_x}:{srd_x+3}], {xo} offen offset:{16*q}")
            n += 1
    g.e("v_lshlrev_b32 v7, 13, v5")
    g.e(f"s_lshl_b32 s6, {s_h}, 8")
    g.e("v_lshlrev_b32 v8, 4, v3")
    g.e("v_add3_u32 v7, v7, s6, v8")
    g.e("s_mov_b32 s6, 0")
    for i in range(32):
        g.e(f"buffer_load_dwordx4 v[{wb+4*i}:{wb+4*i+3}], v7, s[{srd_w}:{srd_w+3}], s6 offen")
        g.e("s_add_u32 s6, s6, 8192")
        n += 1
    return n
WB = 48

def k1_b(g):
    g.c("B path: s7=h s8=b s9=sp")
    g.e("s_mul_i32 s6, s4, 43")
    g.e("s_lshr_b32 s6, s6, 8")
    g.e("s_mul_i32 s7, s6, 6")
    g.e("s_sub_u32 s9, s4, s7")
    g.e("s_lshl_b32 s7, s3, 2")
    g.e("s_add_u32 s7, s7, s6")
    g.e("s_cmp_ge_u32 s9, 3")
    g.e("s_cselect_b32 s8, 1, 0")
    g.e("s_mul_i32 s6, s8, 3")
    g.e("s_sub_u32 s9, s9, s6")
    srd(g, 48, P_WQB, 4 << 20)
    srd(g, 60, P_BX, 2048)
    g.e("s_lshl_b32 s10, s8, 5")
    g.e("s_add_u32 s10, s10, s7")
    g.e("s_lshl_b32 s11, s10, 21")
    g.e("s_mul_i32 s12, s9, 688*256")
    g.e("s_add_u32 s11, s11, s12")
    g.e("s_add_u32 s11, s11, 6144*256")
    g.e("s_cmp_eq_u32 s9, 2")
    g.e("s_cselect_b32 s12, 42, 43")
    g.e("s_lshl_b32 s12, s12, 12")
    for d, p in ((52, P_K), (56, P_V)):
        g.e(f"s_add_u32 s{d}, s{p}, s11")
        g.e(f"s_addc_u32 s{d+1}, s{p+1}, 0")
        g.e(f"s_mov_b32 s{d+2}, s12")
        g.e(f"s_mov_b32 s{d+3}, 0x00020000")
    g.e("s_lshl_b32 s13, s8, 10")
    n = q_phase_loads(g, 60, 48, ["s13"], "s7", wb=32, xb=160)
    g.e("v_lshlrev_b32 v9, 8, v3")
    g.e("v_lshl_add_u32 v9, v4, 4, v9")
    g.e("s_lshl_b32 s6, s5, 12")
    for i in range(11):
        for j in range(4):
            g.e(f"buffer_load_dwordx4 a[{16*i+4*j}:{16*i+4*j+3}], v9, s[52:55], s6 offen offset:{64*j}{NT}")
            n += 1
        g.e("s_add_u32 s6, s6, 16384")
    g.e("s_lshl_b32 s6, s5, 12")
    g.e("s_add_u32 s6, s6, 40*4096")
    g.e("s_cmp_lt_u32 s6, s12")
    g.e(f"s_cselect_b32 s14, 0, {NEGBIG:#x}")
    ACC = 16
    for r in range(8): g.e(f"v_mov_b32 v{ACC+r}, 0")
    total = n
    def wait(i):
        need = total - (4 + i + 1)
        g.e(f"s_waitcnt vmcnt({min(63, need)})")
    stamp(g, 1)
    gemv_rows_bf16x(g, 1, 32, 160, [ACC], 24, wait)
    stamp(g, 2)
    g.e("s_lshl_b32 s6, s5, 11")
    g.e("v_lshlrev_b32 v10, 9, v4")
    g.e("v_lshl_add_u32 v10, v3, 5, v10")
    g.e("v_add_u32 v10, s6, v10")
    g.e("s_nop 1")
    g.e(f"ds_write_b128 v10, v[{ACC}:{ACC+3}]")
    g.e(f"ds_write_b128 v10, v[{ACC+4}:{ACC+7}] offset:16")
    g.e("v_lshlrev_b32 v11, 10, v4")
    g.e("v_lshl_add_u32 v11, v3, 4, v11")
    g.e("s_lshl_b32 s15, s5, 12")
    VT = [32 + 16 * i for i in range(11)]
    for i in range(11):
        for r in range(4):
            g.e(f"buffer_load_dwordx4 v[{VT[i]+4*r}:{VT[i]+4*r+3}], v11, s[56:59], s15 offen offset:{256*r}{NT}")
        g.e("s_add_u32 s15, s15, 16384")
    g.e("s_waitcnt lgkmcnt(0)")
    g.e("s_barrier")
    g.e("v_cmp_gt_u32 vcc, 128, v0")
    g.e("s_and_saveexec_b64 s[68:69], vcc")
    g.e("s_cbranch_execz K1B_Q1")
    g.e("v_lshlrev_b32 v10, 2, v0")
    for p in range(16):
        g.e(f"ds_read_b32 v{208+p}, v10 offset:{512*p}")
    g.e("s_waitcnt lgkmcnt(0)")
    for p in range(1, 16):
        g.e(f"v_add_f32 v208, v208, v{208+p}")
    g.e("v_cvt_pk_bf16_f32 v208, v208, v208")
    g.e("v_lshlrev_b32 v10, 1, v0")
    g.e("ds_write_b16 v10, v208 offset:8192")
    g.lab("K1B_Q1")
    g.e("s_mov_b64 exec, s[68:69]")
    g.e("s_waitcnt lgkmcnt(0)")
    g.e("s_barrier")
    g.e("v_lshlrev_b32 v10, 4, v4")
    QF = 176
    for j in range(4):
        g.e(f"ds_read_b128 a[{QF+4*j}:{QF+4*j+3}], v10 offset:{8192+64*j}")
    g.e("s_waitcnt lgkmcnt(0)")
    stamp(g, 3)
    SC = 224 - 12
    SC = 208
    for i in range(11):
        g.e(f"s_waitcnt vmcnt({min(63, 44 + 4*(10-i))})")
        for j in range(4):
            c = "0" if j == 0 else f"v[{SC+4*i}:{SC+4*i+3}]"
            g.e(f"v_mfma_f32_16x16x32_bf16 v[{SC+4*i}:{SC+4*i+3}], a[{16*i+4*j}:{16*i+4*j+3}], a[{QF+4*j}:{QF+4*j+3}], {c}")
    g.e("s_nop 7")
    g.e("s_nop 1")
    stamp(g, 4)
    round_scale(g, [SC + k for k in range(44)], 24)
    for r in range(4):
        g.e(f"v_add_f32 v{SC+40+r}, s14, v{SC+40+r}")
    g.e(f"v_max3_f32 v24, v{SC}, v{SC+1}, v{SC+2}")
    for k in range(3, 43, 2):
        g.e(f"v_max3_f32 v24, v24, v{SC+k}, v{SC+k+1}")
    g.e(f"v_max_f32 v24, v24, v{SC+43}")
    for sw in ("v_permlane16_swap_b32", "v_permlane32_swap_b32"):
        g.e("v_mov_b32 v25, v24")
        g.e("s_nop 1")
        g.e(f"{sw} v24, v25")
        g.e("s_nop 1")
        g.e("v_max_f32 v24, v24, v25")
    g.e("v_mul_f32 v26, s47, v24")
    g.e("v_sub_f32 v26, 0, v26")
    g.e("v_mov_b32 v27, 0")
    for r in range(8): g.e(f"v_mov_b32 v{ACC+r}, 0")
    for k in range(44):
        g.e(f"v_fma_f32 v{SC+k}, v{SC+k}, s47, v26")
        g.e(f"v_exp_f32 v{SC+k}, v{SC+k}")
    for i in range(11):
        g.e(f"s_waitcnt vmcnt({4*(10-i)})")
        for r in range(4):
            p = SC + 4 * i + r
            lo, hi = 28 + 2 * (r & 1), 29 + 2 * (r & 1)
            g.e(f"v_add_f32 v27, v27, v{p}")
            g.e(f"v_cvt_pk_bf16_f32 v{lo}, v{p}, 0")
            g.e(f"v_cvt_pk_bf16_f32 v{hi}, 0, v{p}")
            g.e("s_nop 1")
            for d in range(4):
                w = VT[i] + 4 * r + d
                g.e(f"v_dot2c_f32_bf16 v{ACC+2*d}, v{w}, v{lo}")
                g.e(f"v_dot2c_f32_bf16 v{ACC+2*d+1}, v{w}, v{hi}")
    g.e("s_nop 3")
    stamp(g, 5)
    g.e("s_lshl_b32 s6, s5, 11")
    g.e("v_lshlrev_b32 v10, 9, v4")
    g.e("v_lshl_add_u32 v10, v3, 5, v10")
    g.e("v_add_u32 v10, s6, v10")
    g.e(f"ds_write_b128 v10, v[{ACC}:{ACC+3}]")
    g.e(f"ds_write_b128 v10, v[{ACC+4}:{ACC+7}] offset:16")
    g.e("s_lshl_b32 s6, s5, 5")
    g.e("v_lshlrev_b32 v10, 3, v4")
    g.e("v_add_u32 v10, s6, v10")
    g.e("v_mov_b32 v25, v27")
    g.e("ds_write_b64 v10, v[24:25] offset:8704")
    g.e("s_waitcnt lgkmcnt(0)")
    g.e("s_barrier")
    g.e("v_cmp_gt_u32 vcc, 128, v0")
    g.e("s_and_saveexec_b64 s[68:69], vcc")
    g.e("s_cbranch_execz K1B_DONE")
    g.e("v_mov_b32 v10, 0")
    for q in range(8):
        g.e(f"ds_read_b128 v[{48+4*q}:{51+4*q}], v10 offset:{8704+16*q}")
    g.e("v_lshlrev_b32 v10, 2, v0")
    for p in range(16):
        g.e(f"ds_read_b32 v{16+p}, v10 offset:{512*p}")
    g.e("s_waitcnt lgkmcnt(0)")
    g.e("v_max_f32 v40, v48, v56")
    g.e("v_max3_f32 v40, v40, v64, v72")
    for w in range(4):
        g.e(f"v_sub_f32 v{44+w}, v{48+8*w}, v40")
        g.e(f"v_mul_f32 v{44+w}, s47, v{44+w}")
        g.e(f"v_exp_f32 v{44+w}, v{44+w}")
    g.e("v_mov_b32 v41, 0")
    g.e("v_mov_b32 v42, 0")
    for w in range(4):
        g.e(f"v_add_f32 v{16+4*w}, v{16+4*w}, v{17+4*w}")
        g.e(f"v_add_f32 v{18+4*w}, v{18+4*w}, v{19+4*w}")
        g.e(f"v_add_f32 v{16+4*w}, v{16+4*w}, v{18+4*w}")
        g.e(f"v_fmac_f32 v42, v{16+4*w}, v{44+w}")
        g.e(f"v_add_f32 v{49+8*w}, v{49+8*w}, v{51+8*w}")
        g.e(f"v_add_f32 v{53+8*w}, v{53+8*w}, v{55+8*w}")
        g.e(f"v_add_f32 v{49+8*w}, v{49+8*w}, v{53+8*w}")
        g.e(f"v_fmac_f32 v41, v{49+8*w}, v{44+w}")
    g.e("s_mul_i32 s6, s10, 3")
    g.e("s_add_u32 s6, s6, s9")
    g.e("s_lshl_b32 s6, s6, 10")
    g.e(f"s_add_u32 s6, s6, {WS_BP}")
    g.e("v_lshlrev_b32 v10, 2, v0")
    g.e("buffer_store_dword v42, v10, s[64:67], s6 offen")
    g.e("v_cmp_eq_u32 vcc, 0, v0")
    g.e("s_and_b64 exec, exec, vcc")
    g.e("buffer_store_dwordx2 v[40:41], v10, s[64:67], s6 offen offset:512")
    g.lab("K1B_DONE")
    g.e("s_mov_b64 exec, -1")
    stamp(g, 6)

LDS_CK = 0
LDS_QP = 0x20000
LDS_QB = 0x24000
LDS_MX = 0x24200
LDS_AL = 0x24400
LDS_LS = 0x24600
LDS_TOTAL = 0x24A00

def fsw(r): return ((r & 3) << 2) | ((r >> 2) & 3)

def k1_a(g):
    g.c("A path: s6=slot' s7=hp s8=chalf s9=a s10=b s11=split")
    g.e("s_sub_u32 s6, s4, 24")
    g.e("s_lshr_b32 s7, s6, 1")
    g.e("s_lshl_b32 s12, s3, 2")
    g.e("s_add_u32 s7, s7, s12")
    g.e("s_and_b32 s8, s6, 1")
    g.e("s_lshl_b32 s9, s3, 3")
    g.e("s_add_u32 s9, s9, s6")
    g.e("s_lshr_b32 s10, s9, 5")
    g.e("s_and_b32 s11, s9, 31")
    srd(g, 48, P_WQA, 4 << 20)
    srd(g, 52, P_WUK, 4 << 20)
    srd(g, 60, P_AX, 2048)
    g.e("s_lshl_b32 s12, s9, 18")
    srd(g, 56, P_CKV, 256 << 10, "s12", 0)
    srd(g, 72, P_DBG, 256)
    g.e("s_movk_i32 s13, 1024")
    n = q_phase_loads(g, 60, 48, ["0", "s13"], "s7")
    g.e("s_lshl_b32 s6, s8, 8")
    g.e("s_lshl_b32 s12, s5, 6")
    g.e("s_add_u32 s6, s6, s12")
    g.e("v_add_u32 v9, s6, v3")
    g.e("v_lshlrev_b32 v9, 13, v9")
    g.e("s_lshl_b32 s12, s7, 8")
    g.e("v_lshlrev_b32 v10, 4, v4")
    g.e("v_add3_u32 v9, v9, s12, v10")
    g.e("s_mov_b32 s12, 0")
    for t in range(4):
        for j in range(4):
            g.e(f"buffer_load_dwordx4 a[{128+16*t+4*j}:{128+16*t+4*j+3}], v9, s[52:55], s12 offen offset:{64*j}")
            n += 1
        g.e("s_add_u32 s12, s12, 16*8192")
    ACC0, ACC1 = 176, 184
    for r in range(16): g.e(f"v_mov_b32 v{ACC0+r}, 0")
    total = n
    def wait(i):
        g.e(f"s_waitcnt vmcnt({min(63, total - (8 + i + 1))})")
    stamp(g, 1)
    gemv_rows_bf16x(g, 2, WB, 16, [ACC0, ACC1], 192, wait)
    stamp(g, 2)
    g.e("s_lshl_b32 s12, s5, 11")
    g.e("v_lshlrev_b32 v10, 9, v4")
    g.e("v_lshl_add_u32 v10, v3, 5, v10")
    g.e("v_add_u32 v10, s12, v10")
    g.e("s_nop 1")
    for bb, A in enumerate((ACC0, ACC1)):
        g.e(f"ds_write_b128 v10, v[{A}:{A+3}] offset:{LDS_QP % 65536 + 8192*bb}") if False else None
    g.e(f"v_add_u32 v10, {LDS_QP:#x}, v10")
    for bb, A in enumerate((ACC0, ACC1)):
        g.e(f"ds_write_b128 v10, v[{A}:{A+3}] offset:{8192*bb}")
        g.e(f"ds_write_b128 v10, v[{A+4}:{A+7}] offset:{8192*bb+16}")
    g.e("s_waitcnt lgkmcnt(0)")
    g.e("s_barrier")
    g.e("v_and_b32 v10, 127, v0")
    g.e("v_lshlrev_b32 v10, 2, v10")
    g.e("v_lshrrev_b32 v11, 7, v0")
    g.e("v_lshl_add_u32 v10, v11, 13, v10")
    g.e(f"v_add_u32 v10, {LDS_QP:#x}, v10")
    for p in range(16):
        g.e(f"ds_read_b32 v{16+p}, v10 offset:{512*p}")
    g.e("s_waitcnt lgkmcnt(0)")
    for p in range(1, 16):
        g.e(f"v_add_f32 v16, v16, v{16+p}")
    g.e("v_cvt_pk_bf16_f32 v16, v16, v16")
    g.e("v_lshlrev_b32 v10, 1, v0")
    g.e(f"v_add_u32 v10, {LDS_QB:#x}, v10")
    g.e("ds_write_b16 v10, v16")
    g.e("s_waitcnt lgkmcnt(0)")
    g.e("s_barrier")
    g.e("v_and_b32 v10, 1, v2")
    g.e("v_lshlrev_b32 v10, 8, v10")
    g.e("v_lshl_add_u32 v10, v4, 4, v10")
    g.e(f"v_add_u32 v10, {LDS_QB:#x}, v10")
    QF = 16
    for j in range(4):
        g.e(f"ds_read_b128 v[{QF+4*j}:{QF+4*j+3}], v10 offset:{64*j}")
    g.e("s_waitcnt vmcnt(0) lgkmcnt(0)")
    D = 32
    for t in range(4):
        for j in range(4):
            c = "0" if j == 0 else f"v[{D+4*t}:{D+4*t+3}]"
            g.e(f"v_mfma_f32_16x16x32_bf16 v[{D+4*t}:{D+4*t+3}], a[{128+16*t+4*j}:{128+16*t+4*j+3}], v[{QF+4*j}:{QF+4*j+3}], {c}")
    g.e("v_lshlrev_b32 v10, 15, v3")
    g.e("s_lshl_b32 s12, s7, 10")
    g.e("s_lshl_b32 s13, s6, 1")
    g.e("s_add_u32 s12, s12, s13")
    g.e("v_lshlrev_b32 v11, 3, v4")
    g.e("v_add3_u32 v10, v10, s12, v11")
    g.e("s_nop 4")
    for t in range(4):
        g.e(f"v_cvt_pk_bf16_f32 v{D+4*t}, v{D+4*t}, v{D+4*t+1}")
        g.e(f"v_cvt_pk_bf16_f32 v{D+4*t+1}, v{D+4*t+2}, v{D+4*t+3}")
    g.e("v_cmp_gt_u32 vcc, 2, v3")
    g.e("s_and_saveexec_b64 s[68:69], vcc")
    for t in range(4):
        g.e(f"buffer_store_dwordx2 v[{D+4*t}:{D+4*t+1}], v10, s[64:67], 0 offen offset:{WS_QABS+32*t} sc1")
    g.e("s_mov_b64 exec, s[68:69]")
    g.e("s_waitcnt vmcnt(0)")
    g.e("s_barrier")
    stamp(g, 3)
    g.e("s_cmp_lg_u32 s5, 0")
    g.e("s_cbranch_scc1 K1A_NOSIG")
    g.e("v_mov_b32 v10, 0")
    g.e("v_mov_b32 v11, 1")
    g.e("s_mov_b64 exec, 1")
    g.e("buffer_atomic_add v11, v10, s[72:75], 0 offen sc1")
    g.e("s_mov_b64 exec, -1")
    g.lab("K1A_NOSIG")
    g.e("v_lshlrev_b32 v12, 4, v2")
    g.e("s_lshl_b32 s12, s5, 15")
    for r in range(32):
        g.e(f"v_xor_b32 v10, {fsw(r & 15) << 4}, v12")
        g.e(f"s_add_u32 s13, s12, {LDS_CK + r*1024}")
        g.e("s_mov_b32 m0, s13")
        g.e(f"s_add_u32 s13, s12, {r*1024}")
        g.e(f"buffer_load_dwordx4 v10, s[56:59], s13 offen{NT} lds")
    g.e("s_add_u32 s12, s12, 0x20000")
    for r in range(32):
        g.e(f"buffer_load_dwordx4 a[{4*r}:{4*r+3}], v12, s[56:59], s12 offen{NT}")
        g.e("s_add_u32 s12, s12, 1024")
    g.e("s_cmp_lg_u32 s5, 0")
    g.e("s_cbranch_scc1 K1A_POLLED")
    g.e("v_mov_b32 v10, 0")
    g.lab("K1A_POLL")
    g.e("buffer_load_dword v11, v10, s[72:75], 0 offen sc1")
    g.e("s_waitcnt vmcnt(0)")
    g.e("v_readfirstlane_b32 s12, v11")
    g.e("s_cmp_ge_u32 s12, 64")
    g.e("s_cbranch_scc1 K1A_POLLED")
    g.e("s_sleep 2")
    g.e("s_branch K1A_POLL")
    g.lab("K1A_POLLED")
    stamp(g, 4)
    g.e("s_barrier")
    g.e("v_and_b32 v5, 31, v2")
    g.e("v_lshrrev_b32 v6, 5, v2")
    g.e("v_lshlrev_b32 v10, 10, v5")
    g.e("v_lshl_add_u32 v10, v6, 4, v10")
    g.e("s_lshl_b32 s12, s10, 15")
    for j in range(32):
        g.e(f"buffer_load_dwordx4 a[{128+4*j}:{128+4*j+3}], v10, s[64:67], s12 offen offset:{WS_QABS+32*j} sc1")
    g.e("v_and_b32 v7, 3, v5")
    g.e("v_lshlrev_b32 v7, 2, v7")
    g.e("v_bfe_u32 v8, v5, 2, 2")
    g.e("v_or_b32 v7, v7, v8")
    g.e("s_lshl_b32 s12, s5, 15")
    g.e("v_lshlrev_b32 v8, 10, v5")
    g.e("v_add_u32 v8, s12, v8")
    QA = 16
    for jj in range(8):
        g.e(f"v_or_b32 v9, {2*jj}, v6")
        g.e("v_xor_b32 v9, v9, v7")
        g.e(f"v_lshl_add_u32 v{QA+jj}, v9, 4, v8")
    TA = 24
    g.e("v_bfe_u32 v9, v2, 2, 2")
    g.e("v_bfe_u32 v10, v2, 4, 1")
    g.e("v_bfe_u32 v11, v2, 1, 1")
    g.e("v_lshl_add_u32 v10, v10, 1, v11")
    g.e("v_and_b32 v11, 1, v2")
    g.e("v_lshlrev_b32 v11, 3, v11")
    g.e("s_lshl_b32 s12, s5, 8")
    g.e("v_add_u32 v11, s12, v11")
    g.e("v_lshl_add_u32 v13, v6, 2, v9")
    g.e("v_lshl_add_u32 v11, v13, 10, v11")
    for s in range(2):
        g.e(f"v_or_b32 v13, {2*s}, v6")
        g.e("v_lshl_add_u32 v13, v9, 2, v13")
        for ct in range(4):
            g.e(f"v_or_b32 v14, {4*ct}, v10")
            g.e("v_xor_b32 v14, v14, v13")
            g.e(f"v_lshl_add_u32 v{TA+4*s+ct}, v14, 4, v11")
    OA = 160
    SCR = 224
    PF = 240
    MRUN, LRUN = 248, 249
    g.e(f"v_mov_b32 v{MRUN}, {NEGBIG:#x}")
    g.e(f"v_mov_b32 v{LRUN}, 0")
    for r in range(64): g.e(f"v_mov_b32 v{OA+r}, 0")
    g.e("s_waitcnt vmcnt(0)")
    g.e("s_barrier")
    for blk in range(2):
        stamp(g, 5 + blk)
        if blk == 1:
            g.e("s_lshl_b32 s12, s5, 15")
            for r in range(32):
                g.e(f"v_xor_b32 v10, {fsw(r & 15) << 4}, v12")
                g.e("v_add_u32 v10, s12, v10")
                g.e(f"ds_write_b128 v10, a[{4*r}:{4*r+3}] offset:{r*1024}")
            g.e("s_waitcnt lgkmcnt(0)")
            g.e("s_barrier")
        for j in range(32):
            a_, jj = j // 8, j % 8
            B = 32 + 4 * (j % 16)
            g.e(f"ds_read_b128 v[{B}:{B+3}], v{QA+jj} offset:{a_*256}")
            if j >= 8:
                jm = j - 8
                Bm = 32 + 4 * (jm % 16)
                g.e("s_waitcnt lgkmcnt(8)")
                c = "0" if jm == 0 else f"v[{SCR}:{SCR+15}]"
                g.e(f"v_mfma_f32_32x32x16_bf16 v[{SCR}:{SCR+15}], v[{Bm}:{Bm+3}], a[{128+4*jm}:{128+4*jm+3}], {c}")
        for jm in range(24, 32):
            Bm = 32 + 4 * (jm % 16)
            g.e(f"s_waitcnt lgkmcnt({31-jm})")
            g.e(f"v_mfma_f32_32x32x16_bf16 v[{SCR}:{SCR+15}], v[{Bm}:{Bm+3}], a[{128+4*jm}:{128+4*jm+3}], v[{SCR}:{SCR+15}]")
        g.e("s_nop 7"); g.e("s_nop 3")
        round_scale(g, [SCR + k for k in range(16)], 32)
        g.e(f"v_max3_f32 v32, v{SCR}, v{SCR+1}, v{SCR+2}")
        for k in range(3, 15, 2):
            g.e(f"v_max3_f32 v32, v32, v{SCR+k}, v{SCR+k+1}")
        g.e(f"v_max_f32 v32, v32, v{SCR+15}")
        g.e("v_mov_b32 v33, v32")
        g.e("s_nop 1")
        g.e("v_permlane32_swap_b32 v32, v33")
        g.e("s_nop 1")
        g.e("v_max_f32 v32, v32, v33")
        g.e("s_lshl_b32 s12, s5, 7")
        g.e("v_lshlrev_b32 v10, 2, v5")
        g.e(f"v_add_u32 v11, {LDS_MX:#x}, v10")
        g.e("v_add_u32 v10, s12, v11")
        g.e("ds_write_b32 v10, v32")
        g.e("s_waitcnt lgkmcnt(0)")
        g.e("s_barrier")
        for w in range(4):
            g.e(f"ds_read_b32 v{32+w}, v11 offset:{128*w}")
        g.e("s_waitcnt lgkmcnt(0)")
        g.e("v_max3_f32 v32, v32, v33, v34")
        g.e(f"v_max3_f32 v32, v32, v35, v{MRUN}")
        g.e(f"v_sub_f32 v33, v{MRUN}, v32")
        g.e("v_mul_f32 v33, s47, v33")
        g.e("v_exp_f32 v33, v33")
        g.e(f"v_mov_b32 v{MRUN}, v32")
        g.e("v_mul_f32 v34, s47, v32")
        g.e("v_sub_f32 v34, 0, v34")
        g.e(f"v_mul_f32 v{LRUN}, v{LRUN}, v33")
        for k in range(16):
            g.e(f"v_fma_f32 v{SCR+k}, v{SCR+k}, s47, v34")
            g.e(f"v_exp_f32 v{SCR+k}, v{SCR+k}")
        g.e("s_nop 0")
        for k in range(16):
            g.e(f"v_add_f32 v{LRUN}, v{LRUN}, v{SCR+k}")
        for k in range(8):
            g.e(f"v_cvt_pk_bf16_f32 v{PF+k}, v{SCR+2*k}, v{SCR+2*k+1}")
        g.e("s_lshl_b32 s12, s5, 11")
        g.e(f"s_add_u32 s12, s12, {LDS_QP:#x}")
        g.e("v_add_u32 v10, s12, v12")
        g.e(f"ds_write_b128 v10, v[{PF}:{PF+3}]")
        g.e(f"ds_write_b128 v10, v[{PF+4}:{PF+7}] offset:1024")
        if blk == 1:
            g.e("s_lshl_b32 s12, s5, 7")
            g.e(f"s_add_u32 s12, s12, {LDS_AL:#x}")
            g.e("v_lshl_add_u32 v10, v5, 2, s12")
            g.e("ds_write_b32 v10, v33")
            g.e("v_lshl_add_u32 v10, v6, 4, s12")
            g.e("s_waitcnt lgkmcnt(0)")
            for q in range(4):
                g.e(f"ds_read_b128 v[{36+4*q}:{39+4*q}], v10 offset:{32*q}")
            g.e("s_waitcnt lgkmcnt(0)")
            for ct in range(4):
                for r in range(16):
                    g.e(f"v_mul_f32 v{OA+16*ct+r}, v{OA+16*ct+r}, v{36+r}")
        g.e("s_waitcnt lgkmcnt(0)")
        g.e("s_barrier")
        g.e(f"v_add_u32 v10, {LDS_QP:#x}, v12")
        for kg in range(8):
            t, f = kg >> 1, kg & 1
            PA = 32 + 4 * (kg & 1)
            g.e(f"ds_read_b128 v[{PA}:{PA+3}], v10 offset:{kg*1024}")
            BB = 40 + 16 * (kg & 1)
            for ct in range(4):
                for s in range(2):
                    off = (32 * t + 16 * f + 8 * s) * 1024
                    g.e(f"v_add_u32 v{72+2*ct+s}, {off}, v{TA+4*s+ct}") if off >= 65536 else None
                    if off >= 65536:
                        g.e(f"ds_read_b64_tr_b16 v[{BB+4*ct+2*s}:{BB+4*ct+2*s+1}], v{72+2*ct+s}")
                    else:
                        g.e(f"ds_read_b64_tr_b16 v[{BB+4*ct+2*s}:{BB+4*ct+2*s+1}], v{TA+4*s+ct} offset:{off}")
            g.e("s_waitcnt lgkmcnt(0)")
            for ct in range(4):
                g.e(f"v_mfma_f32_32x32x16_bf16 v[{OA+16*ct}:{OA+16*ct+15}], v[{PA}:{PA+3}], v[{BB+4*ct}:{BB+4*ct+3}], v[{OA+16*ct}:{OA+16*ct+15}]")
        g.e("s_barrier")
    stamp(g, 7)
    g.e("s_lshl_b32 s12, s5, 8")
    g.e(f"s_add_u32 s12, s12, {LDS_LS:#x}")
    g.e("v_lshl_add_u32 v10, v2, 2, s12")
    g.e(f"ds_write_b32 v10, v{LRUN}")
    g.e("s_waitcnt lgkmcnt(0)")
    g.e("s_barrier")
    g.e("s_lshl_b32 s12, s9, 16")
    g.e(f"s_add_u32 s12, s12, {WS_AO:#x}")
    g.e("s_lshl_b32 s13, s5, 9")
    g.e("s_add_u32 s12, s12, s13")
    g.e("v_lshlrev_b32 v10, 13, v6")
    g.e("v_lshl_add_u32 v10, v5, 2, v10")
    g.e("s_nop 7")
    for r in range(16):
        head = (r & 3) + 8 * (r >> 2)
        g.e(f"s_add_u32 s13, s12, {head*2048}")
        for ct in range(4):
            g.e(f"buffer_store_dword v{OA+16*ct+r}, v10, s[64:67], s13 offen offset:{128*ct}")
    g.e("s_cmp_lg_u32 s5, 0")
    g.e("s_cbranch_scc1 K1A_DONE")
    g.e("v_cmp_gt_u32 vcc, 32, v2")
    g.e("s_and_saveexec_b64 s[68:69], vcc")
    g.e("v_lshlrev_b32 v10, 2, v2")
    g.e(f"v_add_u32 v10, {LDS_LS:#x}, v10")
    for q in range(8):
        g.e(f"ds_read_b32 v{32+q}, v10 offset:{128*q}")
    g.e("s_waitcnt lgkmcnt(0)")
    for q in range(1, 8):
        g.e(f"v_add_f32 v32, v32, v{32+q}")
    g.e(f"v_mov_b32 v33, v32")
    g.e(f"v_mov_b32 v32, v{MRUN}")
    g.e("s_lshl_b32 s12, s9, 8")
    g.e(f"s_add_u32 s12, s12, {WS_AML:#x}")
    g.e("v_lshlrev_b32 v10, 3, v2")
    g.e("buffer_store_dwordx2 v[32:33], v10, s[64:67], s12 offen")
    g.lab("K1A_DONE")
    g.e("s_mov_b64 exec, -1")
    stamp(g, 8)

def gemv2(g, srdw, s_rowbase_bytes, lds_x, s_po):
    ACC = 32
    for r in range(8): g.e(f"v_mov_b32 v{ACC+r}, 0")
    g.e("s_lshl_b32 s6, s5, 7")
    g.e(f"s_add_u32 s6, s6, {lds_x}")
    g.e("v_mov_b32 v10, s6")
    for q in range(8):
        g.e(f"ds_read_b128 v[{176+4*q}:{179+4*q}], v10 offset:{16*q}")
    g.e("s_waitcnt lgkmcnt(0)")
    for i in range(32):
        g.e(f"s_waitcnt vmcnt({31-i})")
        for d in range(4):
            w = WB + 4 * i + d
            g.e(f"v_lshlrev_b32 v{40+d}, 16, v{w}")
            g.e(f"v_and_b32 v{44+d}, s46, v{w}")
        for d in range(4):
            g.e(f"v_fmac_f32 v{ACC+2*d}, v{40+d}, v{176+i}")
            g.e(f"v_fmac_f32 v{ACC+2*d+1}, v{44+d}, v{176+i}")
    g.e("s_lshl_b32 s6, s5, 11")
    g.e("v_lshlrev_b32 v10, 5, v2")
    g.e("v_add_u32 v10, s6, v10")
    g.e(f"ds_write_b128 v10, v[{ACC}:{ACC+3}] offset:4096")
    g.e(f"ds_write_b128 v10, v[{ACC+4}:{ACC+7}] offset:4112")
    g.e("s_waitcnt lgkmcnt(0)")
    g.e("s_barrier")
    g.e("v_lshlrev_b32 v10, 3, v0")
    for w in range(4):
        g.e(f"ds_read_b64 v[{40+2*w}:{41+2*w}], v10 offset:{4096+2048*w}")
    g.e("s_waitcnt lgkmcnt(0)")
    for w in range(1, 4):
        g.e(f"v_add_f32 v40, v40, v{40+2*w}")
        g.e(f"v_add_f32 v41, v41, v{41+2*w}")
    g.e(f"buffer_store_dwordx2 v[40:41], v10, s[64:67], {s_po} offen")

def issue_gemv2_loads(g, srdw, s_rowbase):
    g.e("v_lshlrev_b32 v9, 4, v2")
    g.e("s_lshl_b32 s6, s5, 15")
    g.e(f"s_add_u32 s6, s6, {s_rowbase}")
    for i in range(32):
        g.e(f"buffer_load_dwordx4 v[{WB+4*i}:{WB+4*i+3}], v9, s[{srdw}:{srdw+3}], s6 offen")
        g.e("s_add_u32 s6, s6, 1024")

def k2(g):
    g.lab("k2_kernel")
    g.e("s_cmp_ge_u32 s2, 128")
    g.e("s_cbranch_scc1 K2_END")
    load_kernargs(g)
    g.e("v_lshrrev_b32 v1, 6, v0")
    g.e("v_and_b32 v2, 63, v0")
    g.e("v_readfirstlane_b32 s5, v1")
    g.e("s_mov_b32 s46, 0xffff0000")
    g.e(f"s_mov_b32 s47, {LOG2E:#x}")
    g.e("v_and_b32 v3, 15, v2")
    g.e("v_lshrrev_b32 v4, 4, v2")
    g.e("s_and_b32 s7, s2, 31")
    g.e("s_bfe_u32 s8, s2, 0x10005")
    g.e("s_lshl_b32 s14, s2, 11")
    g.e(f"s_add_u32 s14, s14, {WS_PO:#x}")
    g.e("s_waitcnt lgkmcnt(0)")
    srd(g, 64, P_WS, WS_SIZE)
    g.e("s_cmp_ge_u32 s2, 64")
    g.e("s_cbranch_scc1 K2_B")
    srd(g, 48, P_WUV, 4 << 20)
    srd(g, 52, P_WOA, 4 << 20)
    g.e("v_and_b32 v5, 31, v2")
    g.e("v_lshlrev_b32 v10, 8, v5")
    g.e("s_lshl_b32 s6, s8, 13")
    g.e("s_lshl_b32 s9, s7, 3")
    g.e("s_add_u32 s6, s6, s9")
    g.e(f"s_add_u32 s6, s6, {WS_AML:#x}")
    g.e("buffer_load_dwordx2 v[16:17], v10, s[64:67], s6 offen")
    g.e("v_lshlrev_b32 v11, 3, v0")
    g.e("s_lshl_b32 s6, s8, 21")
    g.e("s_lshl_b32 s9, s7, 11")
    g.e("s_add_u32 s6, s6, s9")
    g.e(f"s_add_u32 s6, s6, {WS_AO:#x}")
    for s in range(32):
        g.e(f"buffer_load_dwordx2 v[{176+2*s}:{177+2*s}], v11, s[64:67], s6 offen")
        g.e("s_add_u32 s6, s6, 65536")
    g.e("s_lshl_b32 s6, s5, 7")
    g.e("v_lshlrev_b32 v5, 5, v4")
    g.e("v_add_u32 v5, s6, v5")
    g.e("v_lshlrev_b32 v7, 13, v5")
    g.e("s_lshl_b32 s6, s7, 8")
    g.e("v_lshlrev_b32 v8, 4, v3")
    g.e("v_add3_u32 v7, v7, s6, v8")
    g.e("s_mov_b32 s6, 0")
    for i in range(32):
        g.e(f"buffer_load_dwordx4 v[{WB+4*i}:{WB+4*i+3}], v7, s[48:51], s6 offen")
        g.e("s_add_u32 s6, s6, 8192")
    g.e("s_waitcnt vmcnt(63)")
    g.e("s_waitcnt vmcnt(62)")
    g.e("v_mov_b32 v18, v16")
    for sh in (1, 2, 4, 8):
        g.e("s_nop 1")
        g.e(f"v_max_f32_dpp v18, v18, v18 row_ror:{sh} row_mask:0xf bank_mask:0xf")
    g.e("v_mov_b32 v19, v18")
    g.e("s_nop 1")
    g.e("v_permlane16_swap_b32 v18, v19")
    g.e("s_nop 1")
    g.e("v_max_f32 v18, v18, v19")
    g.e("v_sub_f32 v16, v16, v18")
    g.e("v_mul_f32 v16, s47, v16")
    g.e("v_exp_f32 v16, v16")
    g.e("s_nop 0")
    g.e("v_mul_f32 v17, v17, v16")
    for sh in (1, 2, 4, 8):
        g.e("s_nop 1")
        g.e(f"v_add_f32_dpp v17, v17, v17 row_ror:{sh} row_mask:0xf bank_mask:0xf")
    g.e("v_mov_b32 v19, v17")
    g.e("s_nop 1")
    g.e("v_permlane16_swap_b32 v17, v19")
    g.e("s_nop 1")
    g.e("v_add_f32 v17, v17, v19")
    g.e("v_rcp_f32 v17, v17")
    g.e("s_nop 0")
    g.e("v_mul_f32 v16, v16, v17")
    g.e("v_mov_b32 v20, 0")
    g.e("v_mov_b32 v21, 0")
    g.e("s_nop 0")
    for s in range(32):
        g.e(f"v_readlane_b32 s9, v16, {s}")
        g.e(f"s_waitcnt vmcnt({32 + 31 - s})")
        g.e("s_nop 0")
        g.e(f"v_fmac_f32 v20, s9, v{176+2*s}")
        g.e(f"v_fmac_f32 v21, s9, v{177+2*s}")
    g.e("ds_write_b64 v11, v[20:21]")
    g.e("s_waitcnt lgkmcnt(0)")
    g.e("s_barrier")
    g.e("v_lshlrev_b32 v10, 2, v5")
    for q in range(8):
        g.e(f"ds_read_b128 v[{176+4*q}:{179+4*q}], v10 offset:{16*q}")
    ACC = 32
    for r in range(8): g.e(f"v_mov_b32 v{ACC+r}, 0")
    g.e("s_waitcnt lgkmcnt(0)")
    for i in range(32):
        g.e(f"s_waitcnt vmcnt({31-i})")
        for d in range(4):
            w = WB + 4 * i + d
            g.e(f"v_lshlrev_b32 v{40+d}, 16, v{w}")
            g.e(f"v_and_b32 v{44+d}, s46, v{w}")
        for d in range(4):
            g.e(f"v_fmac_f32 v{ACC+2*d}, v{40+d}, v{176+i}")
            g.e(f"v_fmac_f32 v{ACC+2*d+1}, v{44+d}, v{176+i}")
    g.e("s_lshl_b32 s9, s7, 17")
    issue_gemv2_loads(g, 52, "s9")
    g.e("s_lshl_b32 s6, s5, 11")
    g.e("v_lshlrev_b32 v10, 9, v4")
    g.e("v_lshl_add_u32 v10, v3, 5, v10")
    g.e("v_add_u32 v10, s6, v10")
    g.e(f"ds_write_b128 v10, v[{ACC}:{ACC+3}] offset:4096")
    g.e(f"ds_write_b128 v10, v[{ACC+4}:{ACC+7}] offset:4112")
    g.e("s_waitcnt lgkmcnt(0)")
    g.e("s_barrier")
    g.e("v_cmp_gt_u32 vcc, 128, v0")
    g.e("s_and_saveexec_b64 s[68:69], vcc")
    g.e("s_cbranch_execz K2A_1")
    g.e("v_lshlrev_b32 v10, 2, v0")
    for p in range(16):
        g.e(f"ds_read_b32 v{16+p}, v10 offset:{4096+512*p}")
    g.e("s_waitcnt lgkmcnt(0)")
    for p in range(1, 16):
        g.e(f"v_add_f32 v16, v16, v{16+p}")
    g.e("v_cvt_pk_bf16_f32 v16, v16, v16")
    g.e("v_and_b32 v16, s46, v16")
    g.e("ds_write_b32 v10, v16 offset:2048")
    g.lab("K2A_1")
    g.e("s_mov_b64 exec, s[68:69]")
    g.e("s_waitcnt lgkmcnt(0)")
    g.e("s_barrier")
    gemv2(g, 52, None, 2048, "s14")
    g.e("s_endpgm")
    g.lab("K2_B")
    srd(g, 52, P_WOB, 4 << 20)
    g.e("s_lshl_b32 s9, s7, 17")
    issue_gemv2_loads(g, 52, "s9")
    g.e("v_cmp_gt_u32 vcc, 128, v0")
    g.e("s_and_saveexec_b64 s[68:69], vcc")
    g.e("s_cbranch_execz K2B_1")
    g.e("s_and_b32 s6, s2, 63")
    g.e("s_mul_i32 s6, s6, 3072")
    g.e(f"s_add_u32 s6, s6, {WS_BP:#x}")
    g.e("v_lshlrev_b32 v10, 2, v0")
    g.e("v_mov_b32 v11, 0")
    for sp in range(3):
        g.e(f"buffer_load_dword v{16+sp}, v10, s[64:67], s6 offen offset:{1024*sp}")
        g.e(f"buffer_load_dwordx2 v[{20+2*sp}:{21+2*sp}], v11, s[64:67], s6 offen offset:{1024*sp+512}")
    g.e("s_waitcnt vmcnt(0)")
    g.e("v_max3_f32 v26, v20, v22, v24")
    g.e("v_mov_b32 v27, 0")
    g.e("v_mov_b32 v28, 0")
    for sp in range(3):
        g.e(f"v_sub_f32 v{20+2*sp}, v{20+2*sp}, v26")
        g.e(f"v_mul_f32 v{20+2*sp}, s47, v{20+2*sp}")
        g.e(f"v_exp_f32 v{20+2*sp}, v{20+2*sp}")
        g.e("s_nop 0")
        g.e(f"v_fmac_f32 v27, v{20+2*sp}, v{21+2*sp}")
        g.e(f"v_fmac_f32 v28, v{20+2*sp}, v{16+sp}")
    g.e("v_rcp_f32 v27, v27")
    g.e("s_nop 0")
    g.e("v_mul_f32 v28, v28, v27")
    g.e("v_cvt_pk_bf16_f32 v28, v28, v28")
    g.e("v_and_b32 v28, s46, v28")
    g.e("ds_write_b32 v10, v28 offset:2048")
    g.lab("K2B_1")
    g.e("s_mov_b64 exec, s[68:69]")
    g.e("s_waitcnt lgkmcnt(0)")
    g.e("s_barrier")
    gemv2(g, 52, None, 2048, "s14")
    g.lab("K2_END")
    g.e("s_endpgm")

def k3(g):
    g.lab("k3_kernel")
    g.e("s_cmp_ge_u32 s2, 8")
    g.e("s_cbranch_scc1 K3_END")
    load_kernargs(g)
    g.e("s_waitcnt lgkmcnt(0)")
    srd(g, 64, P_WS, WS_SIZE)
    srd(g, 48, P_OUT, 4096)
    g.e("s_lshr_b32 s6, s2, 2")
    g.e("s_bfe_u32 s7, s2, 0x10001")
    g.e("s_and_b32 s8, s2, 1")
    g.e("s_lshl_b32 s7, s7, 1")
    g.e("s_add_u32 s7, s7, s6")
    g.e("s_lshl_b32 s7, s7, 16")
    g.e("s_lshl_b32 s8, s8, 10")
    g.e("s_add_u32 s7, s7, s8")
    g.e(f"s_add_u32 s7, s7, {WS_PO:#x}")
    g.e("v_lshlrev_b32 v1, 2, v0")
    for h in range(32):
        g.e(f"buffer_load_dword v{16+h}, v1, s[64:67], s7 offen")
        g.e("s_add_u32 s7, s7, 2048")
    g.e("s_waitcnt vmcnt(0)")
    for h in range(1, 32):
        g.e(f"v_add_f32 v16, v16, v{16+h}")
    g.e("v_cvt_pk_bf16_f32 v16, v16, v16")
    g.e("s_lshl_b32 s6, s2, 9")
    g.e("v_lshlrev_b32 v1, 1, v0")
    g.e("buffer_store_short v16, v1, s[48:51], s6 offen")
    g.lab("K3_END")
    g.e("s_endpgm")

def desc(name, vg, acc):
    return f""".amdhsa_kernel {name}
  .amdhsa_next_free_vgpr {vg}
  .amdhsa_next_free_sgpr 102
  .amdhsa_accum_offset {acc}
  .amdhsa_group_segment_fixed_size 0
  .amdhsa_kernarg_size 112
  .amdhsa_user_sgpr_count 2
  .amdhsa_user_sgpr_kernarg_segment_ptr 1
  .amdhsa_system_sgpr_workgroup_id_x 1
.end_amdhsa_kernel
"""

def main():
    out = HEADER
    out += f"; @launch kernel=k1_kernel grid=(256,1,1) block=(256,1,1) lds={LDS_TOTAL}\n"
    out += "; @launch kernel=k2_kernel grid=(128,1,1) block=(256,1,1) lds=16384\n"
    out += "; @launch kernel=k3_kernel grid=(8,1,1) block=(256,1,1) lds=0\n"
    out += '.amdgcn_target "amdgcn-amd-amdhsa--gfx950"\n.text\n'
    for nm, fn in (("k1_kernel", k1), ("k2_kernel", k2), ("k3_kernel", k3)):
        g = G(); fn(g)
        out += f".globl {nm}\n.p2align 8\n.type {nm},@function\n" + g.text()
    out += '.section .rodata,"a"\n.p2align 6\n'
    out += desc("k1_kernel", 512, 256) + ".p2align 6\n" + desc("k2_kernel", 256, 256) + ".p2align 6\n" + desc("k3_kernel", 64, 64)
    dst = sys.argv[1] if len(sys.argv) > 1 else f"cdna_kernels/{NAME}.s"
    open(dst, "w").write(out)
    print("wrote", dst, len(out))
main()
```

```python
import sys, os
NAME = "concat_heads__compressed_kv_cla__sliding_block_cached__decode"
HEADER = open(f"cdna_kernels/{NAME}.s.ref").read().split("; Override launch geometry")[0]

LOG2E = 0x3FB8AA3B
SCALE = 0x3DB504F3
NEGBIG = 0xF149F2CA

WS_QABS = 0x0
WS_AML = 0x10000
WS_BML = 0x18000
WS_YB = 0x20000
WS_YA = 0x80000
WS_AO = 0x100000
WS_SIZE = 0x800000
STAMPS = os.environ.get("STAMPS", "0") == "1"
NT = " nt"
NTW_ = " nt" if os.environ.get("NTW", "1") == "1" else ""
WS_TS = 0x700000

class G:
    def __init__(self): self.L = []
    def e(self, s): self.L.append("    " + s)
    def lab(self, s): self.L.append(s + ":")
    def c(self, s): self.L.append("    ; " + s)
    def text(self): return "\n".join(self.L) + "\n"

_sid = [0]
def stamp(g, idx):
    if not STAMPS: return
    _sid[0] += 1
    L = f"ST_{_sid[0]}"
    g.e("s_cmp_lg_u32 s5, 0")
    g.e(f"s_cbranch_scc1 {L}")
    g.e("s_memrealtime s[90:91]")
    g.e("s_waitcnt lgkmcnt(0)")
    g.e("v_mov_b32 v14, s90")
    g.e("v_mov_b32 v15, s91")
    g.e("s_lshl_b32 s92, s2, 7")
    g.e(f"s_add_u32 s92, s92, {WS_TS + 8*idx}")
    g.e("buffer_store_dwordx2 v[14:15], off, s[64:67], s92")
    g.lab(L)

def load_kernargs(g):
    g.e("s_load_dwordx16 s[16:31], s[0:1], 0")
    g.e("s_load_dwordx8 s[32:39], s[0:1], 64")
    g.e("s_load_dwordx4 s[40:43], s[0:1], 96")
P_AX, P_CKV, P_WQA, P_WUK, P_WUV, P_WOA, P_BX, P_K, P_V, P_WQB, P_WOB, P_OUT, P_DBG, P_WS = [16 + 2 * i for i in range(14)]

def srd(g, d, p, size, off_lo=None):
    if off_lo is None:
        g.e(f"s_mov_b32 s{d}, s{p}")
        g.e(f"s_mov_b32 s{d+1}, s{p+1}")
    else:
        g.e(f"s_add_u32 s{d}, s{p}, {off_lo}")
        g.e(f"s_addc_u32 s{d+1}, s{p+1}, 0")
    g.e(f"s_mov_b32 s{d+2}, {size}")
    g.e(f"s_mov_b32 s{d+3}, 0x00020000")

def round_scale(g, regs, tmp):
    for i in range(0, len(regs), 2):
        a, b = regs[i], regs[i + 1]
        g.e(f"v_cvt_pk_bf16_f32 v{tmp}, v{a}, v{b}")
        g.e(f"v_lshlrev_b32 v{a}, 16, v{tmp}")
        g.e(f"v_and_b32 v{b}, s46, v{tmp}")
        g.e(f"v_mul_f32 v{a}, s45, v{a}")
        g.e(f"v_mul_f32 v{b}, s45, v{b}")
        g.e(f"v_cvt_pk_bf16_f32 v{tmp}, v{a}, v{b}")
        g.e(f"v_lshlrev_b32 v{a}, 16, v{tmp}")
        g.e(f"v_and_b32 v{b}, s46, v{tmp}")

def gemv_rows_bf16x(g, nb, wbase, xbase, acc, t0, wait_fn):
    for i in range(32):
        wait_fn(i)
        for bb in range(nb):
            xp = xbase + 16 * bb + i // 2
            lo, hi = t0 + 2 * bb, t0 + 2 * bb + 1
            if i % 2 == 0:
                g.e(f"v_and_b32 v{lo}, 0xffff, v{xp}")
                g.e(f"v_lshlrev_b32 v{hi}, 16, v{xp}")
            else:
                g.e(f"v_lshrrev_b32 v{lo}, 16, v{xp}")
                g.e(f"v_and_b32 v{hi}, s46, v{xp}")
        for bb in range(nb):
            lo, hi = t0 + 2 * bb, t0 + 2 * bb + 1
            for d in range(4):
                w = wbase + 4 * i + d
                g.e(f"v_dot2c_f32_bf16 v{acc[bb] + 2*d}, v{w}, v{lo}")
                g.e(f"v_dot2c_f32_bf16 v{acc[bb] + 2*d + 1}, v{w}, v{hi}")

def gemv_agpr_f32x(g, abase, xb, acc, t0):
    for i in range(32):
        t = t0 + 12 * (i & 1)
        for d in range(4):
            g.e(f"v_accvgpr_read_b32 v{t+d}, a{abase+4*i+d}")
        for d in range(4):
            g.e(f"v_lshlrev_b32 v{t+4+d}, 16, v{t+d}")
            g.e(f"v_and_b32 v{t+8+d}, s46, v{t+d}")
        for d in range(4):
            g.e(f"v_fmac_f32 v{acc+2*d}, v{t+4+d}, v{xb+i}")
            g.e(f"v_fmac_f32 v{acc+2*d+1}, v{t+8+d}, v{xb+i}")

def q_phase_loads(g, srd_x, srd_w, xoffs, s_h, wb, xb):
    g.e("s_lshl_b32 s6, s5, 7")
    g.e("v_lshlrev_b32 v5, 5, v4")
    g.e("v_add_u32 v5, s6, v5")
    g.e("v_lshlrev_b32 v6, 1, v5")
    n = 0
    for bb, xo in enumerate(xoffs):
        for q in range(4):
            g.e(f"buffer_load_dwordx4 v[{xb+16*bb+4*q}:{xb+3+16*bb+4*q}], v6, s[{srd_x}:{srd_x+3}], {xo} offen offset:{16*q}")
            n += 1
    g.e("v_lshlrev_b32 v7, 13, v5")
    g.e(f"s_lshl_b32 s6, {s_h}, 8")
    g.e("v_lshlrev_b32 v8, 4, v3")
    g.e("v_add3_u32 v7, v7, s6, v8")
    g.e("s_mov_b32 s6, 0")
    for i in range(32):
        g.e(f"buffer_load_dwordx4 v[{wb+4*i}:{wb+4*i+3}], v7, s[{srd_w}:{srd_w+3}], s6 offen{NTW_}")
        g.e("s_add_u32 s6, s6, 8192")
        n += 1
    return n

def proj_rows(g, abase, lds_x, lds_red, s_dst):
    ACC = 16
    for r in range(8): g.e(f"v_mov_b32 v{ACC+r}, 0")
    g.e("s_lshl_b32 s6, s5, 7")
    g.e(f"s_add_u32 s6, s6, {lds_x}")
    g.e("v_mov_b32 v10, s6")
    for q in range(8):
        g.e(f"ds_read_b128 v[{64+4*q}:{67+4*q}], v10 offset:{16*q}")
    g.e("s_waitcnt vmcnt(0) lgkmcnt(0)")
    gemv_agpr_f32x(g, abase, 64, ACC, 32)
    g.e("s_lshl_b32 s6, s5, 11")
    g.e(f"s_add_u32 s6, s6, {lds_red}")
    g.e("v_lshlrev_b32 v10, 5, v2")
    g.e("v_add_u32 v10, s6, v10")
    g.e(f"ds_write_b128 v10, v[{ACC}:{ACC+3}]")
    g.e(f"ds_write_b128 v10, v[{ACC+4}:{ACC+7}] offset:16")
    g.e("s_waitcnt lgkmcnt(0)")
    g.e("s_barrier")
    g.e("v_lshlrev_b32 v11, 3, v0")
    g.e(f"v_add_u32 v10, {lds_red}, v11")
    for w in range(4):
        g.e(f"ds_read_b64 v[{32+2*w}:{33+2*w}], v10 offset:{2048*w}")
    g.e("s_waitcnt lgkmcnt(0)")
    for w in range(1, 4):
        g.e(f"v_add_f32 v32, v32, v{32+2*w}")
        g.e(f"v_add_f32 v33, v33, v{33+2*w}")
    g.e(f"buffer_store_dwordx2 v[32:33], v11, s[64:67], {s_dst} offen")

WS_QB = 0x1C000
WS_QA = 0x600000
DBG_QABS, DBG_PA0, DBG_QB = 0, 64, 128

def k1(g):
    g.lab("k1_kernel")
    g.e("s_cmp_ge_u32 s2, 256")
    g.e("s_cbranch_scc1 K1_END")
    load_kernargs(g)
    g.e("s_and_b32 s3, s2, 7")
    g.e("s_lshr_b32 s4, s2, 3")
    g.e("v_lshrrev_b32 v1, 6, v0")
    g.e("v_and_b32 v2, 63, v0")
    g.e("v_readfirstlane_b32 s5, v1")
    g.e(f"s_mov_b32 s45, {SCALE:#x}")
    g.e("s_mov_b32 s46, 0xffff0000")
    g.e(f"s_mov_b32 s47, {LOG2E:#x}")
    g.e("v_and_b32 v3, 15, v2")
    g.e("v_lshrrev_b32 v4, 4, v2")
    g.e("s_lshr_b32 s7, s4, 3")
    g.e("s_lshl_b32 s6, s3, 2")
    g.e("s_add_u32 s7, s7, s6")
    g.e("s_and_b32 s4, s4, 7")
    g.e("s_waitcnt lgkmcnt(0)")
    srd(g, 64, P_WS, WS_SIZE)
    srd(g, 72, P_DBG, 256)
    stamp(g, 0)
    g.e("s_cmp_ge_u32 s4, 6")
    g.e("s_cbranch_scc1 K1_A")
    g.e("s_cmp_ge_u32 s4, 3")
    g.e("s_cselect_b32 s8, 1, 0")
    g.e("s_mul_i32 s6, s8, 3")
    g.e("s_sub_u32 s9, s4, s6")
    g.e("s_lshl_b32 s10, s8, 5")
    g.e("s_add_u32 s10, s10, s7")
    g.e("s_cmp_eq_u32 s4, 2")
    g.e("s_cbranch_scc1 K1_PB")
    g.e("s_cmp_eq_u32 s4, 5")
    g.e("s_cbranch_scc1 K1_PA")
    k1_b(g, 14, 53, "L")
    g.e("s_endpgm")
    g.lab("K1_PB")
    prep_b(g)
    k1_b(g, 6, 22, "S1")
    g.e("s_endpgm")
    g.lab("K1_PA")
    prep_a(g)
    k1_b(g, 6, 22, "S2")
    g.e("s_endpgm")
    g.lab("K1_A")
    k1_a(g)
    g.lab("K1_END")
    g.e("s_endpgm")

class LQ:
    def __init__(self, g): self.g = g; self.items = []; self.issued = 0
    def add(self, fn): self.items.append(fn); return len(self.items) - 1
    def issue(self, k=1):
        for _ in range(k):
            if self.issued < len(self.items):
                self.items[self.issued](); self.issued += 1
    def issue_to(self, n):
        while self.issued < min(n, len(self.items)): self.issue()
    def wait(self, idx):
        assert idx < self.issued, (idx, self.issued)
        self.g.e(f"s_waitcnt vmcnt({min(63, self.issued - idx - 1)})")
WIN = int(os.environ.get("WIN", "16"))

def q2_reduce(g, tag):
    g.e("s_lshl_b32 s12, s5, 11")
    g.e("v_lshlrev_b32 v10, 9, v4")
    g.e("v_lshl_add_u32 v10, v3, 5, v10")
    g.e("v_add_u32 v10, s12, v10")
    g.e("s_nop 0")
    for bb, A in enumerate((176, 184)):
        g.e(f"ds_write_b128 v10, v[{A}:{A+3}] offset:{8192*bb}")
        g.e(f"ds_write_b128 v10, v[{A+4}:{A+7}] offset:{8192*bb+16}")
    g.e("s_waitcnt lgkmcnt(0)")
    g.e("s_barrier")
    g.e("v_and_b32 v10, 127, v0")
    g.e("v_lshlrev_b32 v10, 2, v10")
    g.e("v_lshrrev_b32 v11, 7, v0")
    g.e("v_lshl_add_u32 v10, v11, 13, v10")
    for p in range(16):
        g.e(f"ds_read_b32 v{16+p}, v10 offset:{512*p}")
    g.e("s_waitcnt lgkmcnt(0)")
    for p in range(1, 16):
        g.e(f"v_add_f32 v16, v16, v{16+p}")
    g.e("v_cvt_pk_bf16_f32 v16, v16, v16")

def q_gemv_store(g, tag, p_w, p_x, ws_dst, flag_soff, flag_off):
    srd(g, 48, p_w, 4 << 20)
    srd(g, 60, p_x, 2048)
    g.e("s_movk_i32 s13, 1024")
    n = q_phase_loads(g, 60, 48, ["0", "s13"], "s7", 48, 16)
    for r in range(16): g.e(f"v_mov_b32 v{176+r}, 0")
    gemv_rows_bf16x(g, 2, 48, 16, [176, 184], 192, lambda i: g.e(f"s_waitcnt vmcnt({n - (8 + i + 1)})"))
    q2_reduce(g, tag)
    g.e("v_lshrrev_b32 v11, 7, v0")
    g.e("v_and_b32 v10, 127, v0")
    g.e("v_lshlrev_b32 v10, 1, v10")
    g.e("v_lshl_add_u32 v10, v11, 13, v10")
    g.e("s_lshl_b32 s12, s7, 8")
    g.e(f"s_add_u32 s12, s12, {ws_dst:#x}")
    g.e("buffer_store_short v16, v10, s[64:67], s12 offen sc1")
    g.e("s_waitcnt vmcnt(0)")
    g.e("s_barrier")
    g.e("s_cmp_lg_u32 s5, 0")
    g.e(f"s_cbranch_scc1 K1{tag}_1")
    g.e("s_lshl_b32 s12, s7, 2")
    g.e(f"v_mov_b32 v11, {flag_off}")
    g.e("s_mov_b64 exec, 1")
    g.e(f"buffer_atomic_add v11, off, s[72:75], s12 offset:{DBG_QB} sc1")
    g.e("s_mov_b64 exec, -1")
    g.lab(f"K1{tag}_1")

def prep_b(g):
    q_gemv_store(g, "QA", P_WQA, P_AX, WS_QA, None, 1)
    stamp(g, 7)
    q_gemv_store(g, "QB", P_WQB, P_BX, WS_QB, None, 2)
    stamp(g, 8)

def prep_a(g):
    srd(g, 52, P_WUK, 4 << 20)
    srd(g, 76, P_WOB, 4 << 20)
    g.e("s_lshl_b32 s6, s5, 7")
    g.e("v_add_u32 v9, s6, v3")
    g.e("v_lshlrev_b32 v9, 13, v9")
    g.e("s_lshl_b32 s12, s7, 8")
    g.e("v_lshlrev_b32 v10, 4, v4")
    g.e("v_add3_u32 v9, v9, s12, v10")
    g.e("s_mov_b32 s12, 0")
    for t in range(8):
        for j in range(4):
            g.e(f"buffer_load_dwordx4 a[{16*t+4*j}:{16*t+4*j+3}], v9, s[52:55], s12 offen offset:{64*j}{NTW_}")
        g.e("s_add_u32 s12, s12, 16*8192")
    g.e("s_lshl_b32 s12, s7, 2")
    poll(g, "K1PA_P", "s12", DBG_QB, 1)
    g.e("v_and_b32 v10, 1, v2")
    g.e("v_lshlrev_b32 v10, 13, v10")
    g.e("v_lshl_add_u32 v10, v4, 4, v10")
    g.e("s_lshl_b32 s12, s7, 8")
    g.e(f"s_add_u32 s12, s12, {WS_QA:#x}")
    QF = 16
    for j in range(4):
        g.e(f"buffer_load_dwordx4 v[{QF+4*j}:{QF+4*j+3}], v10, s[64:67], s12 offen offset:{64*j} sc1")
    g.e("v_lshlrev_b32 v10, 15, v3")
    g.e("v_lshrrev_b32 v11, 1, v4")
    g.e("v_lshl_add_u32 v10, v11, 9, v10")
    g.e("v_and_b32 v11, 1, v4")
    g.e("v_lshl_add_u32 v10, v11, 3, v10")
    g.e("s_lshl_b32 s12, s7, 4")
    g.e("s_lshl_b32 s13, s5, 13")
    g.e("s_add_u32 s12, s12, s13")
    g.e("v_add_u32 v10, s12, v10")
    g.e("s_waitcnt vmcnt(0)")
    D = 32
    for t in range(8):
        for j in range(4):
            c = "0" if j == 0 else f"v[{D+4*t}:{D+4*t+3}]"
            g.e(f"v_mfma_f32_16x16x32_bf16 v[{D+4*t}:{D+4*t+3}], a[{16*t+4*j}:{16*t+4*j+3}], v[{QF+4*j}:{QF+4*j+3}], {c}")
    g.e("s_nop 7")
    for t in range(8):
        g.e(f"v_cvt_pk_bf16_f32 v{D+4*t}, v{D+4*t}, v{D+4*t+1}")
        g.e(f"v_cvt_pk_bf16_f32 v{D+4*t+1}, v{D+4*t+2}, v{D+4*t+3}")
    g.e("v_cmp_gt_u32 vcc, 2, v3")
    g.e("s_and_saveexec_b64 s[68:69], vcc")
    g.e(f"s_mov_b32 s12, {WS_QABS}")
    for t in range(8):
        if t == 4: g.e("s_add_u32 s12, s12, 4096")
        g.e(f"buffer_store_dwordx2 v[{D+4*t}:{D+4*t+1}], v10, s[64:67], s12 offen offset:{1024*(t%4)} sc1")
    g.e("s_mov_b64 exec, s[68:69]")
    g.e("s_waitcnt vmcnt(0)")
    g.e("s_barrier")
    g.e("s_cmp_lg_u32 s5, 0")
    g.e("s_cbranch_scc1 K1PA_1")
    g.e("v_mov_b32 v11, 1")
    g.e("s_mov_b64 exec, 1")
    g.e(f"buffer_atomic_add v11, off, s[72:75], 0 offset:{DBG_QABS} sc1")
    g.e("s_mov_b64 exec, -1")
    g.lab("K1PA_1")
    stamp(g, 7)
    if os.environ.get("WOPF", "1") == "1":
        g.e("v_lshlrev_b32 v12, 4, v2")
        g.e("s_lshl_b32 s6, s7, 17")
        g.e("s_lshl_b32 s13, s5, 15")
        g.e("s_add_u32 s6, s6, s13")
        for i in range(32):
            g.e(f"buffer_load_dwordx4 v[{48+4*i}:{51+4*i}], v12, s[76:79], s6 offen{NTW_}")
            g.e("s_add_u32 s6, s6, 1024")
        g.e("s_waitcnt vmcnt(0)")
    stamp(g, 8)

def poll(g, tag, soff, ioff, target):
    g.e("s_cmp_lg_u32 s5, 0")
    g.e(f"s_cbranch_scc1 {tag}_OK")
    g.lab(f"{tag}_L")
    g.e(f"buffer_load_dword v11, off, s[72:75], {soff} offset:{ioff} sc1")
    g.e("s_waitcnt vmcnt(0)")
    g.e("v_readfirstlane_b32 s13, v11")
    g.e(f"s_cmp_ge_u32 s13, {target}")
    g.e(f"s_cbranch_scc1 {tag}_OK")
    g.e("s_sleep 1")
    g.e(f"s_branch {tag}_L")
    g.lab(f"{tag}_OK")
    g.e("s_barrier")

def k1_b(g, NTW, NTILES, tag):
    g.c(f"B path {tag}: s7=h s8=b s9=sp s10=bh")
    srd(g, 76, P_WOB, 4 << 20)
    g.e("s_lshl_b32 s11, s10, 21")
    g.e("s_mul_i32 s12, s9, 53*4096")
    g.e("s_add_u32 s11, s11, s12")
    g.e("s_add_u32 s11, s11, 6144*256")
    for d, p in ((52, P_K), (56, P_V)):
        g.e(f"s_add_u32 s{d}, s{p}, s11")
        g.e(f"s_addc_u32 s{d+1}, s{p+1}, 0")
        g.e(f"s_mov_b32 s{d+2}, {NTILES*4096}")
        g.e(f"s_mov_b32 s{d+3}, 0x00020000")
    g.e("v_lshlrev_b32 v9, 8, v3")
    g.e("v_lshl_add_u32 v9, v4, 4, v9")
    g.e("v_lshlrev_b32 v8, 10, v4")
    g.e("v_lshl_add_u32 v8, v3, 4, v8")
    g.e("v_lshlrev_b32 v12, 4, v2")
    g.e("s_lshl_b32 s85, s5, 12")
    g.e("s_mov_b32 s86, s85")
    g.e("s_lshl_b32 s87, s7, 17")
    g.e("s_lshl_b32 s6, s5, 15")
    g.e("s_add_u32 s87, s87, s6")
    g.e(f"s_cmp_lt_u32 s5, {NTILES - 4*(NTW-1)}")
    g.e(f"s_cselect_b32 s14, 0, {NEGBIG:#x}")
    q = LQ(g)
    VT = [32 + 16 * (i % 8) for i in range(NTW)]
    SC = 160
    NS = 4 * NTW
    def ld_k(i, j):
        g.e(f"buffer_load_dwordx4 a[{16*i+4*j}:{16*i+4*j+3}], v9, s[52:55], s85 offen offset:{64*j}{NT}")
        if j == 3: g.e("s_add_u32 s85, s85, 16384")
    iK = [[q.add(lambda i=i, j=j: ld_k(i, j)) for j in range(4)] for i in range(NTW)]
    def ld_v(i, r):
        g.e(f"buffer_load_dwordx4 v[{VT[i]+4*r}:{VT[i]+4*r+3}], v8, s[56:59], s86 offen offset:{256*r}{NT}")
        if r == 3: g.e("s_add_u32 s86, s86, 16384")
    NV1 = min(8, NTW)
    iV = [[q.add(lambda i=i, r=r: ld_v(i, r)) for r in range(4)] for i in range(NV1)]
    QF = 240
    iQ = [q.add(lambda j=j: g.e(f"buffer_load_dwordx4 a[{QF+4*j}:{QF+4*j+3}], v10, s[64:67], s12 offen offset:{64*j} sc1")) for j in range(4)]
    def ld_o(i):
        g.e(f"buffer_load_dwordx4 a[{4*i}:{4*i+3}], v12, s[76:79], s87 offen{NTW_}")
        g.e("s_add_u32 s87, s87, 1024")
    iO = [q.add(lambda i=i: ld_o(i)) for i in range(32)]
    iV += [[q.add(lambda i=i, r=r: ld_v(i, r)) for r in range(4)] for i in range(NV1, NTW)]
    for k in range(4 * (NTW + NV1)):
        if k >= WIN: q.wait(k - WIN)
        q.issue(1)
    stamp(g, 1)
    g.e("s_lshl_b32 s12, s7, 2")
    poll(g, f"K1B{tag}_P", "s12", DBG_QB, 3)
    stamp(g, 2)
    g.e("v_lshlrev_b32 v10, 4, v4")
    g.e("s_lshl_b32 s12, s10, 8")
    g.e(f"s_add_u32 s12, s12, {WS_QB:#x}")
    q.issue(4)
    q.wait(iQ[3])
    stamp(g, 3)
    for i in range(NTW):
        for j in range(4):
            c = "0" if j == 0 else f"v[{SC+4*i}:{SC+4*i+3}]"
            g.e(f"v_mfma_f32_16x16x32_bf16 v[{SC+4*i}:{SC+4*i+3}], a[{16*i+4*j}:{16*i+4*j+3}], a[{QF+4*j}:{QF+4*j+3}], {c}")
        if i >= 1: q.issue(min(4, iO[-1] + 1 - q.issued) if 4 * i <= 32 else 0)
    q.issue_to(iO[0] + WIN)
    stamp(g, 4)
    g.e("s_nop 4")
    ACC = 16
    round_scale(g, [SC + k for k in range(NS)], 24)
    for r in range(4):
        g.e(f"v_add_f32 v{SC+NS-4+r}, s14, v{SC+NS-4+r}")
    g.e(f"v_max3_f32 v24, v{SC}, v{SC+1}, v{SC+2}")
    for k in range(3, NS - 1, 2):
        g.e(f"v_max3_f32 v24, v24, v{SC+k}, v{SC+k+1}")
    g.e(f"v_max_f32 v24, v24, v{SC+NS-1}")
    for sw in ("v_permlane16_swap_b32", "v_permlane32_swap_b32"):
        g.e("v_mov_b32 v25, v24")
        g.e("s_nop 1")
        g.e(f"{sw} v24, v25")
        g.e("s_nop 1")
        g.e("v_max_f32 v24, v24, v25")
    g.e("v_mul_f32 v26, s47, v24")
    g.e("v_sub_f32 v26, 0, v26")
    g.e("v_mov_b32 v27, 0")
    for r in range(8): g.e(f"v_mov_b32 v{ACC+r}, 0")
    for k in range(NS):
        g.e(f"v_fma_f32 v{SC+k}, v{SC+k}, s47, v26")
        g.e(f"v_exp_f32 v{SC+k}, v{SC+k}")
    for i in range(NTW):
        q.issue_to(iV[i][3] + 1)
        q.wait(iV[i][3])
        for r in range(4):
            p = SC + 4 * i + r
            lo, hi = 28 + 2 * (r & 1), 29 + 2 * (r & 1)
            g.e(f"v_add_f32 v27, v27, v{p}")
            g.e(f"v_cvt_pk_bf16_f32 v{lo}, v{p}, 0")
            g.e(f"v_cvt_pk_bf16_f32 v{hi}, 0, v{p}")
            for d in range(4):
                w = VT[i] + 4 * r + d
                g.e(f"v_dot2c_f32_bf16 v{ACC+2*d}, v{w}, v{lo}")
                g.e(f"v_dot2c_f32_bf16 v{ACC+2*d+1}, v{w}, v{hi}")
        lim = iV[i + 8][0] + 4 if i + 8 < NTW else 10**6
        q.issue_to(min(q.issued + 8, lim))
    q.issue_to(10**6)
    stamp(g, 5)
    g.e("s_lshl_b32 s6, s5, 11")
    g.e("v_lshlrev_b32 v10, 9, v4")
    g.e("v_lshl_add_u32 v10, v3, 5, v10")
    g.e("v_add_u32 v10, s6, v10")
    g.e("s_nop 0")
    g.e(f"ds_write_b128 v10, v[{ACC}:{ACC+3}]")
    g.e(f"ds_write_b128 v10, v[{ACC+4}:{ACC+7}] offset:16")
    g.e("s_lshl_b32 s6, s5, 5")
    g.e("v_lshlrev_b32 v10, 3, v4")
    g.e("v_add_u32 v10, s6, v10")
    g.e("v_mov_b32 v25, v27")
    g.e("ds_write_b64 v10, v[24:25] offset:8704")
    g.e("s_waitcnt lgkmcnt(0)")
    g.e("s_barrier")
    g.e("v_cmp_gt_u32 vcc, 128, v0")
    g.e("s_and_saveexec_b64 s[68:69], vcc")
    g.e(f"s_cbranch_execz K1B{tag}_C1")
    g.e("v_mov_b32 v10, 0")
    for qq in range(8):
        g.e(f"ds_read_b128 v[{48+4*qq}:{51+4*qq}], v10 offset:{8704+16*qq}")
    g.e("v_lshlrev_b32 v10, 2, v0")
    for p in range(16):
        g.e(f"ds_read_b32 v{16+p}, v10 offset:{512*p}")
    g.e("s_waitcnt lgkmcnt(0)")
    g.e("v_max_f32 v40, v48, v56")
    g.e("v_max3_f32 v40, v40, v64, v72")
    for w in range(4):
        g.e(f"v_sub_f32 v{44+w}, v{48+8*w}, v40")
        g.e(f"v_mul_f32 v{44+w}, s47, v{44+w}")
        g.e(f"v_exp_f32 v{44+w}, v{44+w}")
    g.e("v_mov_b32 v41, 0")
    g.e("v_mov_b32 v42, 0")
    for w in range(4):
        g.e(f"v_add_f32 v{16+4*w}, v{16+4*w}, v{17+4*w}")
        g.e(f"v_add_f32 v{18+4*w}, v{18+4*w}, v{19+4*w}")
        g.e(f"v_add_f32 v{16+4*w}, v{16+4*w}, v{18+4*w}")
        g.e(f"v_fmac_f32 v42, v{16+4*w}, v{44+w}")
        g.e(f"v_add_f32 v{49+8*w}, v{49+8*w}, v{51+8*w}")
        g.e(f"v_add_f32 v{53+8*w}, v{53+8*w}, v{55+8*w}")
        g.e(f"v_add_f32 v{49+8*w}, v{49+8*w}, v{53+8*w}")
        g.e(f"v_fmac_f32 v41, v{49+8*w}, v{44+w}")
    g.e("ds_write_b32 v10, v42 offset:9216")
    g.e("s_mul_i32 s6, s10, 3")
    g.e("s_add_u32 s6, s6, s9")
    g.e("s_lshl_b32 s13, s6, 3")
    g.e(f"s_add_u32 s13, s13, {WS_BML:#x}")
    g.e("v_cmp_eq_u32 vcc, 0, v0")
    g.e("s_and_b64 exec, exec, vcc")
    g.e("buffer_store_dwordx2 v[40:41], off, s[64:67], s13")
    g.lab(f"K1B{tag}_C1")
    g.e("s_mov_b64 exec, s[68:69]")
    g.e("s_mul_i32 s6, s10, 3")
    g.e("s_add_u32 s6, s6, s9")
    g.e("s_lshl_b32 s14, s6, 11")
    g.e(f"s_add_u32 s14, s14, {WS_YB:#x}")
    g.e("s_waitcnt lgkmcnt(0)")
    g.e("s_barrier")
    proj_rows(g, 0, 9216, 0, "s14")
    stamp(g, 6)

LDS_CK = 0
LDS_QP = 0x20000
LDS_MX = 0x22000
LDS_AL = 0x22200
LDS_LS = 0x22400
LDS_TOTAL = 0x22800

def fsw(r): return ((r & 3) << 2) | ((r >> 2) & 3)

def k1_a(g):
    g.c("A path: s7=h s8=dhalf s9=a s10=b s11=split")
    g.e("s_sub_u32 s8, s4, 6")
    g.e("s_lshl_b32 s9, s7, 1")
    g.e("s_add_u32 s9, s9, s8")
    g.e("s_lshr_b32 s10, s9, 5")
    g.e("s_and_b32 s11, s9, 31")
    g.e("s_lshl_b32 s12, s9, 18")
    srd(g, 56, P_CKV, 256 << 10, "s12")
    srd(g, 76, P_WUV, 4 << 20)
    srd(g, 80, P_WOA, 4 << 20)
    g.e("v_lshlrev_b32 v12, 4, v2")
    g.e("v_and_b32 v5, 31, v2")
    g.e("v_lshrrev_b32 v6, 5, v2")
    g.e("s_lshl_b32 s12, s5, 15")
    nl = 0
    for r in range(32):
        if r >= WIN: g.e(f"s_waitcnt vmcnt({WIN-1})")
        g.e(f"v_xor_b32 v10, {fsw(r & 15) << 4}, v12")
        g.e(f"s_add_u32 s13, s12, {r*1024}")
        g.e("s_mov_b32 m0, s13")
        g.e("s_nop 0")
        g.e(f"buffer_load_dwordx4 v10, s[56:59], s13 offen{NT} lds")
    g.e("s_add_u32 s12, s12, 0x20000")
    for r in range(32):
        g.e(f"s_waitcnt vmcnt({WIN-1})")
        g.e(f"buffer_load_dwordx4 a[{4*r}:{4*r+3}], v12, s[56:59], s12 offen{NT}")
        g.e("s_add_u32 s12, s12, 1024")
    g.e("s_lshl_b32 s6, s5, 7")
    g.e("v_lshrrev_b32 v9, 3, v2")
    g.e("v_lshlrev_b32 v9, 4, v9")
    g.e("v_add_u32 v9, s6, v9")
    g.e("v_lshlrev_b32 v9, 13, v9")
    g.e("s_lshl_b32 s6, s7, 8")
    g.e("s_lshl_b32 s13, s8, 7")
    g.e("s_add_u32 s6, s6, s13")
    g.e("v_and_b32 v10, 7, v2")
    g.e("v_lshlrev_b32 v10, 4, v10")
    g.e("v_add3_u32 v9, v9, s6, v10")
    g.e("s_mov_b32 s6, 0")
    for i in range(16):
        g.e(f"s_waitcnt vmcnt({WIN-1})")
        g.e(f"buffer_load_dwordx4 a[{192+4*i}:{192+4*i+3}], v9, s[76:79], s6 offen{NTW_}")
        g.e("s_add_u32 s6, s6, 8192")
    stamp(g, 1)
    poll(g, "K1A_P1", "0", DBG_QABS, 32)
    stamp(g, 4)
    QB = 128
    g.e("s_lshl_b32 s12, s10, 15")
    for j in range(32):
        if j % 4 == 0 and j: g.e("s_add_u32 s12, s12, 4096")
        g.e(f"buffer_load_dwordx4 v[{QB+4*j}:{QB+4*j+3}], v12, s[64:67], s12 offen offset:{WS_QABS+1024*(j%4)} sc1")
    g.e("v_and_b32 v7, 3, v5")
    g.e("v_lshlrev_b32 v7, 2, v7")
    g.e("v_bfe_u32 v8, v5, 2, 2")
    g.e("v_or_b32 v7, v7, v8")
    g.e("s_lshl_b32 s12, s5, 15")
    g.e("v_lshlrev_b32 v8, 10, v5")
    g.e("v_add_u32 v8, s12, v8")
    QA = 16
    for jj in range(8):
        g.e(f"v_or_b32 v9, {2*jj}, v6")
        g.e("v_xor_b32 v9, v9, v7")
        g.e(f"v_lshl_add_u32 v{QA+jj}, v9, 4, v8")
    TA, TB = 24, 96
    g.e("v_bfe_u32 v9, v2, 2, 2")
    g.e("v_bfe_u32 v10, v2, 4, 1")
    g.e("v_bfe_u32 v11, v2, 1, 1")
    g.e("v_lshl_add_u32 v10, v10, 1, v11")
    g.e("v_and_b32 v11, 1, v2")
    g.e("v_lshlrev_b32 v11, 3, v11")
    g.e("s_lshl_b32 s12, s5, 8")
    g.e("v_add_u32 v11, s12, v11")
    g.e("v_lshl_add_u32 v13, v6, 2, v9")
    g.e("v_lshl_add_u32 v11, v13, 10, v11")
    for s in range(2):
        g.e(f"v_or_b32 v13, {2*s}, v6")
        g.e("v_lshl_add_u32 v13, v9, 2, v13")
        for ct in range(4):
            g.e(f"v_or_b32 v14, {4*ct}, v10")
            g.e("v_xor_b32 v14, v14, v13")
            g.e(f"v_lshl_add_u32 v{TA+4*s+ct}, v14, 4, v11")
            g.e(f"v_add_u32 v{TB+4*s+ct}, 0x10000, v{TA+4*s+ct}")
    OA = 128
    SCR = 104
    PF = 120
    MRUN, LRUN = 7, 8
    g.e(f"v_mov_b32 v{MRUN}, {NEGBIG:#x}")
    g.e(f"v_mov_b32 v{LRUN}, 0")
    for r in range(64): g.e(f"v_accvgpr_write_b32 a{OA+r}, 0")
    g.e("s_waitcnt vmcnt(0)")
    g.e("s_barrier")
    for blk in range(2):
        stamp(g, 5 + blk)
        if blk == 1:
            g.e("s_lshl_b32 s12, s5, 15")
            for r in range(32):
                g.e(f"v_xor_b32 v10, {fsw(r & 15) << 4}, v12")
                g.e("v_add_u32 v10, s12, v10")
                g.e(f"ds_write_b128 v10, a[{4*r}:{4*r+3}] offset:{r*1024}")
            g.e("s_waitcnt lgkmcnt(0)")
            g.e("s_barrier")
            g.e("s_lshl_b32 s6, s7, 17")
            g.e("s_lshl_b32 s13, s8, 16")
            g.e("s_add_u32 s6, s6, s13")
            g.e("s_lshl_b32 s13, s5, 14")
            g.e("s_add_u32 s6, s6, s13")
        for j in range(32):
            a_, jj = j // 8, j % 8
            B = 32 + 4 * (j % 16)
            g.e(f"ds_read_b128 v[{B}:{B+3}], v{QA+jj} offset:{a_*256}")
            if blk == 1 and j % 2 == 0:
                i = j // 2
                g.e(f"buffer_load_dwordx4 a[{4*i}:{4*i+3}], v12, s[80:83], s6 offen{NTW_}")
                g.e("s_add_u32 s6, s6, 1024")
            if j >= 8:
                jm = j - 8
                Bm = 32 + 4 * (jm % 16)
                g.e("s_waitcnt lgkmcnt(8)")
                c = "0" if jm == 0 else f"v[{SCR}:{SCR+15}]"
                g.e(f"v_mfma_f32_32x32x16_bf16 v[{SCR}:{SCR+15}], v[{Bm}:{Bm+3}], v[{QB+4*jm}:{QB+4*jm+3}], {c}")
        for jm in range(24, 32):
            Bm = 32 + 4 * (jm % 16)
            g.e(f"s_waitcnt lgkmcnt({31-jm})")
            g.e(f"v_mfma_f32_32x32x16_bf16 v[{SCR}:{SCR+15}], v[{Bm}:{Bm+3}], v[{QB+4*jm}:{QB+4*jm+3}], v[{SCR}:{SCR+15}]")
        g.e("s_nop 7"); g.e("s_nop 3")
        round_scale(g, [SCR + k for k in range(16)], 32)
        g.e(f"v_max3_f32 v32, v{SCR}, v{SCR+1}, v{SCR+2}")
        for k in range(3, 15, 2):
            g.e(f"v_max3_f32 v32, v32, v{SCR+k}, v{SCR+k+1}")
        g.e(f"v_max_f32 v32, v32, v{SCR+15}")
        g.e("v_mov_b32 v33, v32")
        g.e("s_nop 1")
        g.e("v_permlane32_swap_b32 v32, v33")
        g.e("s_nop 1")
        g.e("v_max_f32 v32, v32, v33")
        g.e("s_lshl_b32 s12, s5, 7")
        g.e("v_lshlrev_b32 v10, 2, v5")
        g.e(f"v_add_u32 v11, {LDS_MX:#x}, v10")
        g.e("v_add_u32 v10, s12, v11")
        g.e("ds_write_b32 v10, v32")
        g.e("s_waitcnt lgkmcnt(0)")
        g.e("s_barrier")
        for w in range(4):
            g.e(f"ds_read_b32 v{32+w}, v11 offset:{128*w}")
        g.e("s_waitcnt lgkmcnt(0)")
        g.e("v_max3_f32 v32, v32, v33, v34")
        g.e(f"v_max3_f32 v32, v32, v35, v{MRUN}")
        g.e(f"v_sub_f32 v33, v{MRUN}, v32")
        g.e("v_mul_f32 v33, s47, v33")
        g.e("v_exp_f32 v33, v33")
        g.e(f"v_mov_b32 v{MRUN}, v32")
        g.e("v_mul_f32 v34, s47, v32")
        g.e("v_sub_f32 v34, 0, v34")
        g.e(f"v_mul_f32 v{LRUN}, v{LRUN}, v33")
        for k in range(16):
            g.e(f"v_fma_f32 v{SCR+k}, v{SCR+k}, s47, v34")
            g.e(f"v_exp_f32 v{SCR+k}, v{SCR+k}")
        g.e("s_nop 0")
        for k in range(16):
            g.e(f"v_add_f32 v{LRUN}, v{LRUN}, v{SCR+k}")
        for k in range(8):
            g.e(f"v_cvt_pk_bf16_f32 v{PF+k}, v{SCR+2*k}, v{SCR+2*k+1}")
        g.e("s_lshl_b32 s12, s5, 11")
        g.e(f"s_add_u32 s12, s12, {LDS_QP:#x}")
        g.e("v_add_u32 v10, s12, v12")
        g.e(f"ds_write_b128 v10, v[{PF}:{PF+3}]")
        g.e(f"ds_write_b128 v10, v[{PF+4}:{PF+7}] offset:1024")
        if blk == 1:
            g.e("s_lshl_b32 s12, s5, 7")
            g.e(f"s_add_u32 s12, s12, {LDS_AL:#x}")
            g.e("v_lshl_add_u32 v10, v5, 2, s12")
            g.e("ds_write_b32 v10, v33")
            g.e("v_lshl_add_u32 v10, v6, 4, s12")
            g.e("s_waitcnt lgkmcnt(0)")
            for qq in range(4):
                g.e(f"ds_read_b128 v[{36+4*qq}:{39+4*qq}], v10 offset:{32*qq}")
            g.e("s_waitcnt lgkmcnt(0)")
            for ct in range(4):
                for r in range(16):
                    g.e(f"v_accvgpr_read_b32 v{56+r}, a{OA+16*ct+r}")
                for r in range(16):
                    g.e(f"v_mul_f32 v{56+r}, v{56+r}, v{36+r}")
                for r in range(16):
                    g.e(f"v_accvgpr_write_b32 a{OA+16*ct+r}, v{56+r}")
        g.e("s_waitcnt lgkmcnt(0)")
        g.e("s_barrier")
        g.e(f"v_add_u32 v10, {LDS_QP:#x}, v12")
        def pv_reads(kg):
            t, f = kg >> 1, kg & 1
            PA = 32 + 4 * (kg & 1)
            BB = 40 + 16 * (kg & 1)
            g.e(f"ds_read_b128 v[{PA}:{PA+3}], v10 offset:{kg*1024}")
            for ct in range(4):
                for s in range(2):
                    off = (32 * t + 16 * f + 8 * s) * 1024
                    base = TA if off < 65536 else TB
                    g.e(f"ds_read_b64_tr_b16 v[{BB+4*ct+2*s}:{BB+4*ct+2*s+1}], v{base+4*s+ct} offset:{off % 65536}")
        pv_reads(0)
        for kg in range(8):
            PA = 32 + 4 * (kg & 1)
            BB = 40 + 16 * (kg & 1)
            if kg < 7:
                pv_reads(kg + 1)
                g.e("s_waitcnt lgkmcnt(9)")
            else:
                g.e("s_waitcnt lgkmcnt(0)")
            for ct in range(4):
                g.e(f"v_mfma_f32_32x32x16_bf16 a[{OA+16*ct}:{OA+16*ct+15}], v[{PA}:{PA+3}], v[{BB+4*ct}:{BB+4*ct+3}], a[{OA+16*ct}:{OA+16*ct+15}]")
        g.e("s_barrier")
    stamp(g, 7)
    g.e("s_lshl_b32 s12, s5, 8")
    g.e(f"s_add_u32 s12, s12, {LDS_LS:#x}")
    g.e("v_lshl_add_u32 v10, v2, 2, s12")
    g.e(f"ds_write_b32 v10, v{LRUN}")
    g.e("s_lshl_b32 s12, s9, 15")
    g.e(f"s_add_u32 s12, s12, {WS_AO:#x}")
    g.e("s_lshl_b32 s13, s5, 8")
    g.e("s_add_u32 s12, s12, s13")
    g.e("v_lshlrev_b32 v10, 12, v6")
    g.e("v_lshl_add_u32 v10, v5, 2, v10")
    g.e("s_nop 7")
    for r in range(16):
        head = (r & 3) + 8 * (r >> 2)
        g.e(f"s_add_u32 s13, s12, {head*1024}")
        for p in range(2):
            t = 32 + 4 * (r & 3) + 2 * p
            g.e(f"v_accvgpr_read_b32 v{t}, a{OA+32*p+r}")
            g.e(f"v_accvgpr_read_b32 v{t+1}, a{OA+32*p+16+r}")
            g.e(f"v_cvt_pk_bf16_f32 v{t}, v{t}, v{t+1}")
            g.e(f"buffer_store_dword v{t}, v10, s[64:67], s13 offen offset:{128*p} sc1")
    g.e("s_waitcnt lgkmcnt(0)")
    g.e("s_barrier")
    g.e("s_cmp_lg_u32 s5, 0")
    g.e("s_cbranch_scc1 K1A_ML1")
    g.e("v_cmp_gt_u32 vcc, 32, v2")
    g.e("s_and_saveexec_b64 s[68:69], vcc")
    g.e("v_lshlrev_b32 v10, 2, v2")
    g.e(f"v_add_u32 v10, {LDS_LS:#x}, v10")
    for qq in range(8):
        g.e(f"ds_read_b32 v{64+qq}, v10 offset:{128*qq}")
    g.e("s_waitcnt lgkmcnt(0)")
    for qq in range(1, 8):
        g.e(f"v_add_f32 v64, v64, v{64+qq}")
    g.e(f"v_mov_b32 v65, v64")
    g.e(f"v_mov_b32 v64, v{MRUN}")
    g.e("s_lshl_b32 s12, s9, 8")
    g.e(f"s_add_u32 s12, s12, {WS_AML:#x}")
    g.e("v_lshlrev_b32 v10, 3, v2")
    g.e("buffer_store_dwordx2 v[64:65], v10, s[64:67], s12 offen sc1")
    g.e("s_mov_b64 exec, s[68:69]")
    g.lab("K1A_ML1")
    g.e("s_waitcnt vmcnt(0)")
    g.e("s_barrier")
    stamp(g, 8)
    g.e("s_cmp_lg_u32 s5, 0")
    g.e("s_cbranch_scc1 K1A_SIG2")
    g.e("v_mov_b32 v11, 1")
    g.e("s_mov_b64 exec, 1")
    g.e(f"buffer_atomic_add v11, off, s[72:75], 0 offset:{DBG_PA0} sc1")
    g.e("s_mov_b64 exec, -1")
    g.lab("K1A_SIG2")
    poll(g, "K1A_P2", "0", DBG_PA0, 64)
    stamp(g, 9)
    g.e("v_lshlrev_b32 v10, 8, v2")
    g.e("s_lshl_b32 s6, s7, 3")
    g.e(f"s_add_u32 s6, s6, {WS_AML:#x}")
    g.e("buffer_load_dwordx2 v[16:17], v10, s[64:67], s6 offen sc1")
    g.e("s_lshl_b32 s6, s7, 10")
    g.e("s_lshl_b32 s13, s5, 19")
    g.e("s_add_u32 s6, s6, s13")
    g.e(f"s_add_u32 s6, s6, {WS_AO:#x}")
    for s_ in range(16):
        g.e(f"buffer_load_dwordx4 v[{128+4*s_}:{131+4*s_}], v12, s[64:67], s6 offen sc1")
        g.e("s_add_u32 s6, s6, 32768")
    g.e("s_waitcnt vmcnt(16)")
    g.e("v_mov_b32 v18, v16")
    for sh in (1, 2, 4, 8):
        g.e("s_nop 1")
        g.e(f"v_max_f32_dpp v18, v18, v18 row_ror:{sh} row_mask:0xf bank_mask:0xf")
    g.e("v_mov_b32 v19, v18")
    g.e("s_nop 1")
    g.e("v_permlane16_swap_b32 v18, v19")
    g.e("s_nop 1")
    g.e("v_max_f32 v18, v18, v19")
    g.e("v_sub_f32 v16, v16, v18")
    g.e("v_mul_f32 v16, s47, v16")
    g.e("v_exp_f32 v16, v16")
    g.e("s_nop 0")
    g.e("v_mul_f32 v17, v17, v16")
    for sh in (1, 2, 4, 8):
        g.e("s_nop 1")
        g.e(f"v_add_f32_dpp v17, v17, v17 row_ror:{sh} row_mask:0xf bank_mask:0xf")
    g.e("v_mov_b32 v19, v17")
    g.e("s_nop 1")
    g.e("v_permlane16_swap_b32 v17, v19")
    g.e("s_nop 1")
    g.e("v_add_f32 v17, v17, v19")
    g.e("v_rcp_f32 v17, v17")
    g.e("s_nop 0")
    g.e("v_mul_f32 v16, v16, v17")
    for r in range(8): g.e(f"v_mov_b32 v{24+r}, 0")
    g.e("s_lshl_b32 s6, s5, 4")
    for s_ in range(16):
        g.e(f"s_add_u32 s15, s6, {s_}")
        g.e("v_readlane_b32 s13, v16, s15")
        g.e(f"s_waitcnt vmcnt({15 - s_})")
        for d in range(4):
            g.e(f"v_lshlrev_b32 v{32+d}, 16, v{128+4*s_+d}")
            g.e(f"v_and_b32 v{36+d}, s46, v{128+4*s_+d}")
        for d in range(4):
            g.e(f"v_fmac_f32 v{24+d}, s13, v{32+d}")
            g.e(f"v_fmac_f32 v{28+d}, s13, v{36+d}")
    g.e("v_lshrrev_b32 v10, 3, v2")
    g.e("v_and_b32 v11, 7, v2")
    g.e("v_lshlrev_b32 v11, 4, v11")
    g.e("v_lshl_add_u32 v10, v10, 8, v11")
    g.e("s_lshl_b32 s6, s5, 11")
    g.e("v_add_u32 v10, s6, v10")
    g.e("ds_write_b128 v10, v[24:27] offset:40960")
    g.e("ds_write_b128 v10, v[28:31] offset:41088")
    g.e("s_waitcnt lgkmcnt(0)")
    g.e("s_barrier")
    g.e("v_lshrrev_b32 v10, 7, v0")
    g.e("v_and_b32 v11, 127, v0")
    g.e("v_lshlrev_b32 v11, 4, v11")
    g.e("v_lshl_add_u32 v24, v10, 12, v11")
    g.e("v_lshl_add_u32 v25, v10, 11, v11")
    g.e("ds_read_b128 v[32:35], v24 offset:40960")
    g.e("ds_read_b128 v[36:39], v24 offset:43008")
    g.e("s_waitcnt lgkmcnt(0)")
    for d in range(4):
        g.e(f"v_add_f32 v{32+d}, v{32+d}, v{36+d}")
    g.e("ds_write_b128 v25, v[32:35]")
    g.e("s_waitcnt lgkmcnt(0)")
    g.e("s_barrier")
    g.e("s_lshl_b32 s6, s5, 9")
    g.e("v_lshrrev_b32 v10, 3, v2")
    g.e("v_lshlrev_b32 v10, 6, v10")
    g.e("v_add_u32 v10, s6, v10")
    for bb in range(2):
        for qq in range(4):
            g.e(f"ds_read_b128 v[{64+16*bb+4*qq}:{67+16*bb+4*qq}], v10 offset:{2048*bb+16*qq}")
    for r in range(16): g.e(f"v_mov_b32 v{16+r}, 0")
    g.e("s_waitcnt lgkmcnt(0)")
    def gemv2b(abase, n):
        for i in range(n):
            t = 32 + 12 * (i & 1)
            for d in range(4):
                g.e(f"v_accvgpr_read_b32 v{t+d}, a{abase+4*i+d}")
            for d in range(4):
                g.e(f"v_lshlrev_b32 v{t+4+d}, 16, v{t+d}")
                g.e(f"v_and_b32 v{t+8+d}, s46, v{t+d}")
            for bb in range(2):
                for d in range(4):
                    g.e(f"v_fmac_f32 v{16+8*bb+2*d}, v{t+4+d}, v{64+16*bb+i}")
                    g.e(f"v_fmac_f32 v{16+8*bb+2*d+1}, v{t+8+d}, v{64+16*bb+i}")
    gemv2b(192, 16)
    g.e("s_lshl_b32 s6, s5, 11")
    g.e("v_lshlrev_b32 v10, 5, v2")
    g.e("v_add_u32 v10, s6, v10")
    for bb in range(2):
        g.e(f"ds_write_b128 v10, v[{16+8*bb}:{19+8*bb}] offset:{4096+8192*bb}")
        g.e(f"ds_write_b128 v10, v[{20+8*bb}:{23+8*bb}] offset:{4096+8192*bb+16}")
    g.e("s_waitcnt lgkmcnt(0)")
    g.e("s_barrier")
    g.e("v_cmp_gt_u32 vcc, 128, v0")
    g.e("s_and_saveexec_b64 s[68:69], vcc")
    g.e("s_cbranch_execz K1A_F2")
    g.e("v_lshrrev_b32 v10, 6, v0")
    g.e("v_lshlrev_b32 v10, 13, v10")
    g.e("v_lshl_add_u32 v10, v2, 2, v10")
    for p in range(32):
        g.e(f"ds_read_b32 v{32+p}, v10 offset:{4096+256*p}")
    g.e("s_waitcnt lgkmcnt(0)")
    for p in range(1, 32):
        g.e(f"v_add_f32 v32, v32, v{32+p}")
    g.e("v_cvt_pk_bf16_f32 v32, v32, v32")
    g.e("v_and_b32 v32, s46, v32")
    g.e("v_lshlrev_b32 v10, 2, v0")
    g.e("ds_write_b32 v10, v32 offset:20480")
    g.lab("K1A_F2")
    g.e("s_mov_b64 exec, s[68:69]")
    g.e("s_waitcnt lgkmcnt(0)")
    g.e("s_barrier")
    g.e("s_lshl_b32 s6, s5, 6")
    g.e("v_mov_b32 v10, s6")
    for bb in range(2):
        for qq in range(4):
            g.e(f"ds_read_b128 v[{64+16*bb+4*qq}:{67+16*bb+4*qq}], v10 offset:{20480+256*bb+16*qq}")
    for r in range(16): g.e(f"v_mov_b32 v{16+r}, 0")
    g.e("s_waitcnt lgkmcnt(0)")
    gemv2b(0, 16)
    g.e("s_lshl_b32 s6, s5, 11")
    g.e("v_lshlrev_b32 v10, 5, v2")
    g.e("v_add_u32 v10, s6, v10")
    for bb in range(2):
        g.e(f"ds_write_b128 v10, v[{16+8*bb}:{19+8*bb}] offset:{24576+8192*bb}")
        g.e(f"ds_write_b128 v10, v[{20+8*bb}:{23+8*bb}] offset:{24576+8192*bb+16}")
    g.e("s_waitcnt lgkmcnt(0)")
    g.e("s_barrier")
    g.e("v_lshlrev_b32 v11, 3, v0")
    for bb in range(2):
        for w in range(4):
            g.e(f"ds_read_b64 v[{32+8*bb+2*w}:{33+8*bb+2*w}], v11 offset:{24576+8192*bb+2048*w}")
    g.e("s_waitcnt lgkmcnt(0)")
    for bb in range(2):
        for w in range(1, 4):
            g.e(f"v_add_f32 v{32+8*bb}, v{32+8*bb}, v{32+8*bb+2*w}")
            g.e(f"v_add_f32 v{33+8*bb}, v{33+8*bb}, v{33+8*bb+2*w}")
    g.e("s_lshl_b32 s14, s9, 11")
    g.e(f"s_add_u32 s14, s14, {WS_YA:#x}")
    g.e("buffer_store_dwordx2 v[32:33], v11, s[64:67], s14 offen")
    g.e("s_add_u32 s14, s14, 0x20000")
    g.e("buffer_store_dwordx2 v[40:41], v11, s[64:67], s14 offen")
    stamp(g, 10)

def k2(g):
    g.lab("k2_kernel")
    g.e("s_cmp_ge_u32 s2, 32")
    g.e("s_cbranch_scc1 K2_END")
    load_kernargs(g)
    g.e("v_lshrrev_b32 v1, 6, v0")
    g.e("v_and_b32 v2, 63, v0")
    g.e("v_readfirstlane_b32 s5, v1")
    g.e(f"s_mov_b32 s47, {LOG2E:#x}")
    g.e("s_lshr_b32 s8, s2, 4")
    g.e("s_bfe_u32 s9, s2, 0x10003")
    g.e("s_and_b32 s10, s2, 7")
    g.e("s_lshl_b32 s11, s8, 5")
    g.e("s_lshl_b32 s6, s5, 3")
    g.e("s_add_u32 s11, s11, s6")
    g.e("v_lshlrev_b32 v10, 2, v2")
    g.e("s_lshl_b32 s12, s10, 8")
    g.e("s_waitcnt lgkmcnt(0)")
    srd(g, 64, P_WS, WS_SIZE)
    srd(g, 48, P_OUT, 4096)
    g.e("v_mov_b32 v16, 0")
    g.e("s_cmp_eq_u32 s9, 1")
    g.e("s_cbranch_scc1 K2_B")
    g.e("s_lshl_b32 s6, s11, 12")
    g.e("s_add_u32 s6, s6, s12")
    g.e(f"s_add_u32 s6, s6, {WS_YA:#x}")
    for h in range(16):
        g.e(f"buffer_load_dword v{32+h}, v10, s[64:67], s6 offen")
        g.e("s_add_u32 s6, s6, 2048")
    g.e("s_waitcnt vmcnt(0)")
    for h in range(16):
        g.e(f"v_add_f32 v16, v16, v{32+h}")
    g.e("s_branch K2_RED")
    g.lab("K2_B")
    g.e("s_mul_i32 s6, s11, 6144")
    g.e("s_add_u32 s6, s6, s12")
    g.e(f"s_add_u32 s6, s6, {WS_YB:#x}")
    g.e("s_mul_i32 s13, s11, 24")
    g.e(f"s_add_u32 s13, s13, {WS_BML:#x}")
    for h in range(8):
        g.e(f"buffer_load_dwordx4 v[{64+8*h}:{67+8*h}], off, s[64:67], s13 offset:{24*h}")
        g.e(f"buffer_load_dwordx2 v[{68+8*h}:{69+8*h}], off, s[64:67], s13 offset:{24*h+16}")
    for k in range(24):
        g.e(f"buffer_load_dword v{32+k}, v10, s[64:67], s6 offen")
        g.e("s_add_u32 s6, s6, 2048")
    g.e("s_waitcnt vmcnt(24)")
    for h in range(8):
        m = [64 + 8 * h + 2 * sp for sp in range(3)]
        g.e(f"v_max3_f32 v17, v{m[0]}, v{m[1]}, v{m[2]}")
        for sp in range(3):
            g.e(f"v_sub_f32 v{m[sp]}, v{m[sp]}, v17")
            g.e(f"v_mul_f32 v{m[sp]}, s47, v{m[sp]}")
            g.e(f"v_exp_f32 v{m[sp]}, v{m[sp]}")
        g.e("s_nop 0")
        g.e(f"v_mul_f32 v17, v{m[0]}, v{m[0]+1}")
        g.e(f"v_fmac_f32 v17, v{m[1]}, v{m[1]+1}")
        g.e(f"v_fmac_f32 v17, v{m[2]}, v{m[2]+1}")
        g.e("v_rcp_f32 v17, v17")
        g.e("s_nop 0")
        for sp in range(3):
            g.e(f"v_mul_f32 v{m[sp]}, v{m[sp]}, v17")
    g.e("s_waitcnt vmcnt(0)")
    for h in range(8):
        for sp in range(3):
            g.e(f"v_fmac_f32 v16, v{64+8*h+2*sp}, v{32+3*h+sp}")
    g.lab("K2_RED")
    g.e("v_lshlrev_b32 v11, 2, v0")
    g.e("ds_write_b32 v11, v16")
    g.e("s_waitcnt lgkmcnt(0)")
    g.e("s_barrier")
    g.e("s_cmp_lg_u32 s5, 0")
    g.e("s_cbranch_scc1 K2_END")
    for w in range(4):
        g.e(f"ds_read_b32 v{20+w}, v10 offset:{256*w}")
    g.e("s_waitcnt lgkmcnt(0)")
    g.e("v_add_f32 v20, v20, v21")
    g.e("v_add_f32 v22, v22, v23")
    g.e("v_add_f32 v20, v20, v22")
    g.e("v_cvt_pk_bf16_f32 v20, v20, v20")
    g.e("s_lshl_b32 s6, s2, 7")
    g.e("v_lshlrev_b32 v11, 1, v2")
    g.e("buffer_store_short v20, v11, s[48:51], s6 offen")
    g.lab("K2_END")
    g.e("s_endpgm")

def desc(name, vg, acc):
    return f""".amdhsa_kernel {name}
  .amdhsa_next_free_vgpr {vg}
  .amdhsa_next_free_sgpr 102
  .amdhsa_accum_offset {acc}
  .amdhsa_group_segment_fixed_size 0
  .amdhsa_kernarg_size 112
  .amdhsa_user_sgpr_count 2
  .amdhsa_user_sgpr_kernarg_segment_ptr 1
  .amdhsa_system_sgpr_workgroup_id_x 1
.end_amdhsa_kernel
"""

def main():
    out = HEADER
    out += f"; @launch kernel=k1_kernel grid=(256,1,1) block=(256,1,1) lds={LDS_TOTAL}\n"
    out += "; @launch kernel=k2_kernel grid=(32,1,1) block=(256,1,1) lds=1024\n"
    out += '.amdgcn_target "amdgcn-amd-amdhsa--gfx950"\n.text\n'
    for nm, fn in (("k1_kernel", k1), ("k2_kernel", k2)):
        g = G(); fn(g)
        out += f".globl {nm}\n.p2align 8\n.type {nm},@function\n" + g.text()
    out += '.section .rodata,"a"\n.p2align 6\n'
    out += desc("k1_kernel", 512, 256) + ".p2align 6\n" + desc("k2_kernel", 128, 128)
    dst = sys.argv[1] if len(sys.argv) > 1 else f"cdna_kernels/{NAME}.s"
    open(dst, "w").write(out)
    print("wrote", dst, len(out))
main()
```

```python
import sys, os
NAME = "concat_heads__compressed_kv_cla__sliding_block_cached__decode"
HEADER = open(f"cdna_kernels/{NAME}.s.ref").read().split("; Override launch geometry")[0]

LOG2E = 0x3FB8AA3B
SCALE = 0x3DB504F3
NEGBIG = 0xF149F2CA

WS_QABS = 0x0
WS_AML = 0x10000
WS_BP = 0x20000
WS_Y = 0x80000
WS_AO = 0x100000
WS_QP = 0x600000
WS_SIZE = 0x800000
STAMPS = os.environ.get("STAMPS", "0") == "1"
NT = " nt"
NTW_ = " nt" if os.environ.get("NTW", "1") == "1" else ""
WS_TS = 0x700000

class G:
    def __init__(self): self.L = []
    def e(self, s): self.L.append("    " + s)
    def lab(self, s): self.L.append(s + ":")
    def c(self, s): self.L.append("    ; " + s)
    def text(self): return "\n".join(self.L) + "\n"

_sid = [0]
def stamp(g, idx):
    if not STAMPS: return
    _sid[0] += 1
    L = f"ST_{_sid[0]}"
    g.e("s_cmp_lg_u32 s5, 0")
    g.e(f"s_cbranch_scc1 {L}")
    g.e("s_memrealtime s[90:91]")
    g.e("s_waitcnt lgkmcnt(0)")
    g.e("v_mov_b32 v14, s90")
    g.e("v_mov_b32 v15, s91")
    g.e("s_lshl_b32 s92, s2, 7")
    g.e(f"s_add_u32 s92, s92, {WS_TS + 8*idx}")
    g.e("buffer_store_dwordx2 v[14:15], off, s[64:67], s92")
    g.lab(L)

def load_kernargs(g):
    g.e("s_load_dwordx16 s[16:31], s[0:1], 0")
    g.e("s_load_dwordx8 s[32:39], s[0:1], 64")
    g.e("s_load_dwordx4 s[40:43], s[0:1], 96")
P_AX, P_CKV, P_WQA, P_WUK, P_WUV, P_WOA, P_BX, P_K, P_V, P_WQB, P_WOB, P_OUT, P_DBG, P_WS = [16 + 2 * i for i in range(14)]

def srd(g, d, p, size, off_lo=None):
    if off_lo is None:
        g.e(f"s_mov_b32 s{d}, s{p}")
        g.e(f"s_mov_b32 s{d+1}, s{p+1}")
    else:
        g.e(f"s_add_u32 s{d}, s{p}, {off_lo}")
        g.e(f"s_addc_u32 s{d+1}, s{p+1}, 0")
    g.e(f"s_mov_b32 s{d+2}, {size}")
    g.e(f"s_mov_b32 s{d+3}, 0x00020000")

def round_scale(g, regs, tmp):
    for i in range(0, len(regs), 2):
        a, b = regs[i], regs[i + 1]
        g.e(f"v_cvt_pk_bf16_f32 v{tmp}, v{a}, v{b}")
        g.e(f"v_lshlrev_b32 v{a}, 16, v{tmp}")
        g.e(f"v_and_b32 v{b}, s46, v{tmp}")
        g.e(f"v_mul_f32 v{a}, s45, v{a}")
        g.e(f"v_mul_f32 v{b}, s45, v{b}")
        g.e(f"v_cvt_pk_bf16_f32 v{tmp}, v{a}, v{b}")
        g.e(f"v_lshlrev_b32 v{a}, 16, v{tmp}")
        g.e(f"v_and_b32 v{b}, s46, v{tmp}")

def gemv_rows_bf16x(g, nb, wbase, xbase, acc, t0, wait_fn):
    for i in range(32):
        wait_fn(i)
        for bb in range(nb):
            xp = xbase + 16 * bb + i // 2
            lo, hi = t0 + 2 * bb, t0 + 2 * bb + 1
            if i % 2 == 0:
                g.e(f"v_and_b32 v{lo}, 0xffff, v{xp}")
                g.e(f"v_lshlrev_b32 v{hi}, 16, v{xp}")
            else:
                g.e(f"v_lshrrev_b32 v{lo}, 16, v{xp}")
                g.e(f"v_and_b32 v{hi}, s46, v{xp}")
        for bb in range(nb):
            lo, hi = t0 + 2 * bb, t0 + 2 * bb + 1
            for d in range(4):
                w = wbase + 4 * i + d
                g.e(f"v_dot2c_f32_bf16 v{acc[bb] + 2*d}, v{w}, v{lo}")
                g.e(f"v_dot2c_f32_bf16 v{acc[bb] + 2*d + 1}, v{w}, v{hi}")

def gemv_agpr_f32x(g, abase, xb, acc, t0):
    for i in range(32):
        t = t0 + 12 * (i & 1)
        for d in range(4):
            g.e(f"v_accvgpr_read_b32 v{t+d}, a{abase+4*i+d}")
        for d in range(4):
            g.e(f"v_lshlrev_b32 v{t+4+d}, 16, v{t+d}")
            g.e(f"v_and_b32 v{t+8+d}, s46, v{t+d}")
        for d in range(4):
            g.e(f"v_fmac_f32 v{acc+2*d}, v{t+4+d}, v{xb+i}")
            g.e(f"v_fmac_f32 v{acc+2*d+1}, v{t+8+d}, v{xb+i}")

def q_phase_loads(g, srd_x, srd_w, xoffs, s_h, wb, xb):
    g.e("s_lshl_b32 s6, s5, 7")
    g.e("v_lshlrev_b32 v5, 5, v4")
    g.e("v_add_u32 v5, s6, v5")
    g.e("v_lshlrev_b32 v6, 1, v5")
    n = 0
    for bb, xo in enumerate(xoffs):
        for q in range(4):
            g.e(f"buffer_load_dwordx4 v[{xb+16*bb+4*q}:{xb+3+16*bb+4*q}], v6, s[{srd_x}:{srd_x+3}], {xo} offen offset:{16*q}")
            n += 1
    g.e("v_lshlrev_b32 v7, 13, v5")
    g.e(f"s_lshl_b32 s6, {s_h}, 8")
    g.e("v_lshlrev_b32 v8, 4, v3")
    g.e("v_add3_u32 v7, v7, s6, v8")
    g.e("s_mov_b32 s6, 0")
    for i in range(32):
        g.e(f"buffer_load_dwordx4 v[{wb+4*i}:{wb+4*i+3}], v7, s[{srd_w}:{srd_w+3}], s6 offen{NTW_}")
        g.e("s_add_u32 s6, s6, 8192")
        n += 1
    return n

def proj_rows(g, abase, lds_x, lds_red, s_dst):
    ACC = 16
    for r in range(8): g.e(f"v_mov_b32 v{ACC+r}, 0")
    g.e("s_lshl_b32 s6, s5, 7")
    g.e(f"s_add_u32 s6, s6, {lds_x}")
    g.e("v_mov_b32 v10, s6")
    for q in range(8):
        g.e(f"ds_read_b128 v[{64+4*q}:{67+4*q}], v10 offset:{16*q}")
    g.e("s_waitcnt vmcnt(0) lgkmcnt(0)")
    gemv_agpr_f32x(g, abase, 64, ACC, 32)
    g.e("s_lshl_b32 s6, s5, 11")
    g.e(f"s_add_u32 s6, s6, {lds_red}")
    g.e("v_lshlrev_b32 v10, 5, v2")
    g.e("v_add_u32 v10, s6, v10")
    g.e(f"ds_write_b128 v10, v[{ACC}:{ACC+3}]")
    g.e(f"ds_write_b128 v10, v[{ACC+4}:{ACC+7}] offset:16")
    g.e("s_waitcnt lgkmcnt(0)")
    g.e("s_barrier")
    g.e("v_lshlrev_b32 v11, 3, v0")
    g.e(f"v_add_u32 v10, {lds_red}, v11")
    for w in range(4):
        g.e(f"ds_read_b64 v[{32+2*w}:{33+2*w}], v10 offset:{2048*w}")
    g.e("s_waitcnt lgkmcnt(0)")
    for w in range(1, 4):
        g.e(f"v_add_f32 v32, v32, v{32+2*w}")
        g.e(f"v_add_f32 v33, v33, v{33+2*w}")
    g.e(f"buffer_store_dwordx2 v[32:33], v11, s[64:67], {s_dst} offen")


DBG_QABS, DBG_PA0, DBG_H = 0, 64, 128
WIN = int(os.environ.get("WIN", "16"))
SLP = int(os.environ.get("SLP", "1"))
class LQ:
    def __init__(self, g): self.g = g; self.items = []; self.issued = 0
    def add(self, fn): self.items.append(fn); return len(self.items) - 1
    def issue(self, k=1):
        for _ in range(k):
            if self.issued < len(self.items):
                self.items[self.issued](); self.issued += 1
    def issue_to(self, n):
        while self.issued < min(n, len(self.items)): self.issue()
    def wait(self, idx):
        assert idx < self.issued, (idx, self.issued)
        self.g.e(f"s_waitcnt vmcnt({min(63, self.issued - idx - 1)})")

def poll(g, tag, soff, ioff, target, mask=None):
    g.e("s_cmp_lg_u32 s5, 0")
    g.e(f"s_cbranch_scc1 {tag}_OK")
    g.lab(f"{tag}_L")
    g.e(f"buffer_load_dword v11, off, s[72:75], {soff} offset:{ioff} sc1")
    g.e("s_waitcnt vmcnt(0)")
    g.e("v_readfirstlane_b32 s13, v11")
    if mask is not None:
        g.e("s_nop 0")
        g.e(f"s_and_b32 s13, s13, {mask}")
    g.e(f"s_cmp_ge_u32 s13, {target}")
    g.e(f"s_cbranch_scc1 {tag}_OK")
    g.e(f"s_sleep {SLP}")
    g.e(f"s_branch {tag}_L")
    g.lab(f"{tag}_OK")
    g.e("s_barrier")

def signal(g, tag, soff, ioff, val):
    g.e("s_waitcnt vmcnt(0)")
    g.e("s_barrier")
    g.e("s_cmp_lg_u32 s5, 0")
    g.e(f"s_cbranch_scc1 {tag}_S")
    g.e(f"v_mov_b32 v11, {val}")
    g.e("s_mov_b64 exec, 1")
    g.e(f"buffer_atomic_add v11, off, s[72:75], {soff} offset:{ioff} sc1")
    g.e("s_mov_b64 exec, -1")
    g.lab(f"{tag}_S")

def k1(g):
    g.lab("k1_kernel")
    g.e("s_cmp_ge_u32 s2, 256")
    g.e("s_cbranch_scc1 K1_END")
    load_kernargs(g)
    g.e("s_and_b32 s3, s2, 7")
    g.e("s_lshr_b32 s4, s2, 3")
    g.e("v_lshrrev_b32 v1, 6, v0")
    g.e("v_and_b32 v2, 63, v0")
    g.e("v_readfirstlane_b32 s5, v1")
    g.e(f"s_mov_b32 s45, {SCALE:#x}")
    g.e("s_mov_b32 s46, 0xffff0000")
    g.e(f"s_mov_b32 s47, {LOG2E:#x}")
    g.e("v_and_b32 v3, 15, v2")
    g.e("v_lshrrev_b32 v4, 4, v2")
    g.e("s_lshr_b32 s7, s4, 3")
    g.e("s_lshl_b32 s6, s3, 2")
    g.e("s_add_u32 s7, s7, s6")
    g.e("s_and_b32 s4, s4, 7")
    g.e("s_lshl_b32 s70, s7, 2")
    g.e("s_waitcnt lgkmcnt(0)")
    srd(g, 64, P_WS, WS_SIZE)
    srd(g, 72, P_DBG, 256)
    stamp(g, 0)
    g.e("s_cmp_ge_u32 s4, 4")
    g.e("s_cbranch_scc1 K1_A")
    k1_b(g)
    g.e("s_endpgm")
    g.lab("K1_A")
    k1_a(g)
    g.lab("K1_END")
    g.e("s_endpgm")

def sum_q(g, tag, mat, own_b, lds_off):
    g.e("s_lshl_b32 s12, s7, 13")
    g.e(f"s_add_u32 s12, s12, {WS_QP + mat*1024:#x}")
    if own_b:
        g.e("s_lshl_b32 s13, s8, 9")
        g.e("s_add_u32 s12, s12, s13")
        g.e("v_cmp_gt_u32 vcc, 128, v0")
        g.e("s_and_saveexec_b64 s[68:69], vcc")
        g.e(f"s_cbranch_execz SQ{tag}")
    g.e("v_lshlrev_b32 v10, 2, v0")
    g.e("s_add_u32 s13, s12, 4096")
    for k in range(4):
        g.e(f"buffer_load_dword v{224+k}, v10, s[64:67], {'s12' if k < 2 else 's13'} offen offset:{2048*(k%2)} sc1")
    g.e("s_waitcnt vmcnt(0)")
    g.e("v_add_f32 v224, v224, v225")
    g.e("v_add_f32 v226, v226, v227")
    g.e("v_add_f32 v224, v224, v226")
    g.e("v_cvt_pk_bf16_f32 v224, v224, v224")
    g.e("v_lshlrev_b32 v10, 1, v0")
    g.e(f"v_add_u32 v10, {lds_off}, v10")
    g.e("ds_write_b16 v10, v224")
    if own_b:
        g.lab(f"SQ{tag}")
        g.e("s_mov_b64 exec, s[68:69]")
    g.e("s_waitcnt lgkmcnt(0)")
    g.e("s_barrier")

def prep1(g):
    g.e("s_mov_b32 s71, s8")
    srd(g, 48, P_WQA, 4 << 20)
    srd(g, 52, P_WQB, 4 << 20)
    srd(g, 56, P_AX, 2048)
    srd(g, 60, P_BX, 2048)
    g.e("s_lshl_b32 s6, s71, 7")
    g.e("s_lshl_b32 s12, s5, 5")
    g.e("s_add_u32 s6, s6, s12")
    g.e("v_lshlrev_b32 v5, 3, v4")
    g.e("v_add_u32 v5, s6, v5")
    g.e("v_lshlrev_b32 v6, 1, v5")
    for mat, sx in enumerate((56, 60)):
        for bb in range(2):
            r = 16 + 8 * mat + 4 * bb
            g.e(f"buffer_load_dwordx4 v[{r}:{r+3}], v6, s[{sx}:{sx+3}], 0 offen offset:{1024*bb}")
    g.e("v_lshlrev_b32 v7, 13, v5")
    g.e("s_lshl_b32 s6, s7, 8")
    g.e("v_lshlrev_b32 v8, 4, v3")
    g.e("v_add3_u32 v7, v7, s6, v8")
    for mat, sw in enumerate((48, 52)):
        g.e("s_mov_b32 s6, 0")
        for i in range(8):
            r = 96 + 32 * mat + 4 * i
            g.e(f"buffer_load_dwordx4 v[{r}:{r+3}], v7, s[{sw}:{sw+3}], s6 offen{NTW_}")
            g.e("s_add_u32 s6, s6, 8192")
    AC = 48
    for r in range(32): g.e(f"v_mov_b32 v{AC+r}, 0")
    for mat in range(2):
        for i in range(8):
            g.e(f"s_waitcnt vmcnt({15 - (8*mat + i)})")
            for bb in range(2):
                xp = 16 + 8 * mat + 4 * bb + i // 2
                lo, hi = 80 + 2 * bb, 81 + 2 * bb
                if i % 2 == 0:
                    g.e(f"v_and_b32 v{lo}, 0xffff, v{xp}")
                    g.e(f"v_lshlrev_b32 v{hi}, 16, v{xp}")
                else:
                    g.e(f"v_lshrrev_b32 v{lo}, 16, v{xp}")
                    g.e(f"v_and_b32 v{hi}, s46, v{xp}")
            for bb in range(2):
                lo, hi = 80 + 2 * bb, 81 + 2 * bb
                for d in range(4):
                    w = 96 + 32 * mat + 4 * i + d
                    a = AC + 16 * mat + 8 * bb + 2 * d
                    g.e(f"v_dot2c_f32_bf16 v{a}, v{w}, v{lo}")
                    g.e(f"v_dot2c_f32_bf16 v{a+1}, v{w}, v{hi}")
    g.e("s_lshl_b32 s6, s5, 13")
    g.e("v_lshlrev_b32 v10, 11, v4")
    g.e("v_lshl_add_u32 v10, v3, 5, v10")
    g.e("v_add_u32 v10, s6, v10")
    for k in range(4):
        a = AC + 8 * k
        g.e(f"ds_write_b128 v10, v[{a}:{a+3}] offset:{512*k}")
        g.e(f"ds_write_b128 v10, v[{a+4}:{a+7}] offset:{512*k+16}")
    g.e("s_waitcnt lgkmcnt(0)")
    g.e("s_barrier")
    g.e("v_lshlrev_b32 v10, 3, v0")
    for p in range(16):
        g.e(f"ds_read_b64 v[{96+2*p}:{97+2*p}], v10 offset:{2048*p}")
    g.e("s_waitcnt lgkmcnt(0)")
    for p in range(1, 16):
        g.e(f"v_add_f32 v96, v96, v{96+2*p}")
        g.e(f"v_add_f32 v97, v97, v{97+2*p}")
    g.e("s_lshl_b32 s12, s7, 13")
    g.e("s_lshl_b32 s13, s71, 11")
    g.e("s_add_u32 s12, s12, s13")
    g.e(f"s_add_u32 s12, s12, {WS_QP:#x}")
    g.e("buffer_store_dwordx2 v[96:97], v10, s[64:67], s12 offen sc1")
    signal(g, "K1A_S0", "s70", DBG_H, 1)
    stamp(g, 2)

def wuk_loads(g):
    g.e("s_mov_b32 s71, s4")
    srd(g, 76, P_WUK, 4 << 20)
    g.e("s_lshl_b32 s12, s5, 5")
    g.e("s_lshl_b32 s6, s71, 7")
    g.e("s_add_u32 s6, s6, s12")
    g.e("v_add_u32 v9, s6, v3")
    g.e("v_lshlrev_b32 v9, 13, v9")
    g.e("s_lshl_b32 s6, s7, 8")
    g.e("v_lshlrev_b32 v10, 4, v4")
    g.e("v_add3_u32 v9, v9, s6, v10")
    g.e("s_mov_b32 s6, 0")
    for t in range(2):
        for j in range(4):
            g.e(f"buffer_load_dwordx4 v[{192+16*t+4*j}:{192+16*t+4*j+3}], v9, s[76:79], s6 offen offset:{64*j}{NTW_}")
        g.e("s_add_u32 s6, s6, 16*8192")

def prep2(g):
    poll(g, "K1A_P0", "s70", DBG_H, 4, mask=255)
    sum_q(g, "A", 0, False, LDS_QB)
    g.e("v_and_b32 v10, 1, v2")
    g.e("v_lshlrev_b32 v10, 8, v10")
    g.e("v_lshl_add_u32 v10, v4, 4, v10")
    g.e(f"v_add_u32 v10, {LDS_QB:#x}, v10")
    QF = 160
    for j in range(4):
        g.e(f"ds_read_b128 v[{QF+4*j}:{QF+4*j+3}], v10 offset:{64*j}")
    g.e("v_lshlrev_b32 v10, 15, v3")
    g.e("v_lshrrev_b32 v11, 1, v4")
    g.e("v_lshl_add_u32 v10, v11, 9, v10")
    g.e("v_and_b32 v11, 1, v4")
    g.e("v_lshl_add_u32 v10, v11, 3, v10")
    g.e("s_lshl_b32 s12, s7, 4")
    g.e("s_lshl_b32 s13, s5, 11")
    g.e("s_add_u32 s12, s12, s13")
    g.e("s_lshl_b32 s13, s71, 13")
    g.e("s_add_u32 s12, s12, s13")
    g.e("v_add_u32 v10, s12, v10")
    g.e("s_waitcnt lgkmcnt(0)")
    D = 176
    for t in range(2):
        for j in range(4):
            c = "0" if j == 0 else f"v[{D+4*t}:{D+4*t+3}]"
            g.e(f"v_mfma_f32_16x16x32_bf16 v[{D+4*t}:{D+4*t+3}], v[{192+16*t+4*j}:{192+16*t+4*j+3}], v[{QF+4*j}:{QF+4*j+3}], {c}")
    g.e("s_nop 7")
    for t in range(2):
        g.e(f"v_cvt_pk_bf16_f32 v{D+4*t}, v{D+4*t}, v{D+4*t+1}")
        g.e(f"v_cvt_pk_bf16_f32 v{D+4*t+1}, v{D+4*t+2}, v{D+4*t+3}")
    g.e("v_cmp_gt_u32 vcc, 2, v3")
    g.e("s_and_saveexec_b64 s[68:69], vcc")
    for t in range(2):
        g.e(f"buffer_store_dwordx2 v[{D+4*t}:{D+4*t+1}], v10, s[64:67], 0 offen offset:{WS_QABS+1024*t} sc1")
    g.e("s_mov_b64 exec, s[68:69]")
    signal(g, "K1A_S1", "0", DBG_QABS, 1)
    stamp(g, 8)


def k1_b(g):
    NTW = 16
    wuk_loads(g)
    g.e("s_lshr_b32 s8, s4, 1")
    g.e("s_and_b32 s9, s4, 1")
    g.e("s_lshl_b32 s10, s8, 5")
    g.e("s_add_u32 s10, s10, s7")
    g.e("s_lshl_b32 s11, s10, 21")
    g.e("s_lshl_b32 s12, s9, 18")
    g.e("s_add_u32 s11, s11, s12")
    g.e("s_add_u32 s11, s11, 6144*256")
    for d, p in ((52, P_K), (56, P_V)):
        g.e(f"s_add_u32 s{d}, s{p}, s11")
        g.e(f"s_addc_u32 s{d+1}, s{p+1}, 0")
        g.e(f"s_mov_b32 s{d+2}, {64*4096}")
        g.e(f"s_mov_b32 s{d+3}, 0x00020000")
    g.e("v_lshlrev_b32 v9, 4, v2")
    g.e("s_lshl_b32 s85, s5, 10")
    g.e("s_mov_b32 s86, s85")
    q = LQ(g)
    NU = 64
    VR = 32
    SC, NS, QF = 160, 64, 240
    def ld_k(i):
        g.e(f"buffer_load_dwordx4 a[{4*i}:{4*i+3}], v9, s[52:55], s85 offen{NT}")
        g.e("s_add_u32 s85, s85, 4096")
    iK = [q.add(lambda i=i: ld_k(i)) for i in range(NU)]
    def ld_v(i):
        r = 32 + 4 * (i % VR)
        g.e(f"buffer_load_dwordx4 v[{r}:{r+3}], v9, s[56:59], s86 offen{NT}")
        g.e("s_add_u32 s86, s86, 4096")
    iV = [q.add(lambda i=i: ld_v(i)) for i in range(NU)]
    KP = int(os.environ.get("KP", "32"))
    for k in range(NU):
        if k == KP:
            stamp(g, 1)
            prep2(g)
            stamp(g, 2)
        if k >= WIN and not (KP <= k < KP + WIN): q.wait(k - WIN)
        q.issue(1)
    sum_q(g, "B", 1, True, 8192)
    g.e("v_lshlrev_b32 v10, 4, v3")
    g.e(f"ds_read_b128 v[{QF}:{QF+3}], v10 offset:8192")
    g.e("s_waitcnt vmcnt(0)")
    q.issue(WIN)
    g.e("s_waitcnt lgkmcnt(0)")
    stamp(g, 3)
    T = 224
    for u0 in range(0, NU, 4):
        for k in range(4):
            for d in range(4):
                g.e(f"v_accvgpr_read_b32 v{T+4*k+d}, a{4*(u0+k)+d}")
        for k in range(4):
            g.e(f"v_dot2_f32_bf16 v{SC+u0+k}, v{T+4*k}, v{QF}, 0")
        for d in range(1, 4):
            for k in range(4):
                g.e(f"v_dot2c_f32_bf16 v{SC+u0+k}, v{T+4*k+d}, v{QF+d}")
        if u0 >= 4:
            for sh in (8, 4, 2, 1):
                for k in range(4):
                    r = SC + u0 - 4 + k
                    g.e(f"v_add_f32_dpp v{r}, v{r}, v{r} row_ror:{sh} row_mask:0xf bank_mask:0xf")
        q.issue_to(min(q.issued + 1, iV[VR - 1] + 1))
    g.e("s_nop 2")
    for sh in (8, 4, 2, 1):
        for k in range(4):
            r = SC + NU - 4 + k
            g.e(f"v_add_f32_dpp v{r}, v{r}, v{r} row_ror:{sh} row_mask:0xf bank_mask:0xf")
    q.issue_to(iV[VR - 1] + 1)
    stamp(g, 4)
    ACC = 16
    round_scale(g, [SC + k for k in range(NS)], 24)
    g.e(f"v_max3_f32 v24, v{SC}, v{SC+1}, v{SC+2}")
    for k in range(3, NS - 1, 2):
        g.e(f"v_max3_f32 v24, v24, v{SC+k}, v{SC+k+1}")
    g.e(f"v_max_f32 v24, v24, v{SC+NS-1}")
    for sw in ("v_permlane16_swap_b32", "v_permlane32_swap_b32"):
        g.e("v_mov_b32 v25, v24")
        g.e("s_nop 1")
        g.e(f"{sw} v24, v25")
        g.e("s_nop 1")
        g.e("v_max_f32 v24, v24, v25")
    g.e("v_mul_f32 v26, s47, v24")
    g.e("v_sub_f32 v26, 0, v26")
    g.e("v_mov_b32 v27, 0")
    for r in range(8): g.e(f"v_mov_b32 v{ACC+r}, 0")
    for k in range(NS):
        g.e(f"v_fma_f32 v{SC+k}, v{SC+k}, s47, v26")
        g.e(f"v_exp_f32 v{SC+k}, v{SC+k}")
    for i in range(NU):
        q.issue_to(iV[i] + 1)
        q.wait(iV[i])
        p = SC + i
        lo, hi = 28 + 2 * (i & 1), 29 + 2 * (i & 1)
        g.e(f"v_add_f32 v27, v27, v{p}")
        g.e(f"v_cvt_pk_bf16_f32 v{lo}, v{p}, 0")
        g.e(f"v_cvt_pk_bf16_f32 v{hi}, 0, v{p}")
        for d in range(4):
            w = 32 + 4 * (i % VR) + d
            g.e(f"v_dot2c_f32_bf16 v{ACC+2*d}, v{w}, v{lo}")
            g.e(f"v_dot2c_f32_bf16 v{ACC+2*d+1}, v{w}, v{hi}")
        if i + VR < NU: q.issue_to(iV[i + VR] + 1)
    stamp(g, 5)
    g.e("s_lshl_b32 s6, s5, 11")
    g.e("v_lshlrev_b32 v10, 9, v4")
    g.e("v_lshl_add_u32 v10, v3, 5, v10")
    g.e("v_add_u32 v10, s6, v10")
    g.e("s_nop 0")
    g.e(f"ds_write_b128 v10, v[{ACC}:{ACC+3}]")
    g.e(f"ds_write_b128 v10, v[{ACC+4}:{ACC+7}] offset:16")
    g.e("s_lshl_b32 s6, s5, 5")
    g.e("v_lshlrev_b32 v10, 3, v4")
    g.e("v_add_u32 v10, s6, v10")
    g.e("v_mov_b32 v25, v27")
    g.e("ds_write_b64 v10, v[24:25] offset:8704")
    g.e("s_waitcnt lgkmcnt(0)")
    g.e("s_barrier")
    g.e("v_cmp_gt_u32 vcc, 128, v0")
    g.e("s_and_saveexec_b64 s[68:69], vcc")
    g.e("s_cbranch_execz K1B_C1")
    g.e("v_mov_b32 v10, 0")
    for qq in range(8):
        g.e(f"ds_read_b128 v[{48+4*qq}:{51+4*qq}], v10 offset:{8704+16*qq}")
    g.e("v_lshlrev_b32 v10, 2, v0")
    for p in range(16):
        g.e(f"ds_read_b32 v{16+p}, v10 offset:{512*p}")
    g.e("s_waitcnt lgkmcnt(0)")
    g.e("v_max_f32 v40, v48, v56")
    g.e("v_max3_f32 v40, v40, v64, v72")
    for w in range(4):
        g.e(f"v_sub_f32 v{44+w}, v{48+8*w}, v40")
        g.e(f"v_mul_f32 v{44+w}, s47, v{44+w}")
        g.e(f"v_exp_f32 v{44+w}, v{44+w}")
    g.e("v_mov_b32 v41, 0")
    g.e("v_mov_b32 v42, 0")
    for w in range(4):
        g.e(f"v_add_f32 v{16+4*w}, v{16+4*w}, v{17+4*w}")
        g.e(f"v_add_f32 v{18+4*w}, v{18+4*w}, v{19+4*w}")
        g.e(f"v_add_f32 v{16+4*w}, v{16+4*w}, v{18+4*w}")
        g.e(f"v_fmac_f32 v42, v{16+4*w}, v{44+w}")
        g.e(f"v_add_f32 v{49+8*w}, v{49+8*w}, v{51+8*w}")
        g.e(f"v_add_f32 v{53+8*w}, v{53+8*w}, v{55+8*w}")
        g.e(f"v_add_f32 v{49+8*w}, v{49+8*w}, v{53+8*w}")
        g.e(f"v_fmac_f32 v41, v{49+8*w}, v{44+w}")
    g.e("s_lshl_b32 s6, s10, 1")
    g.e("s_add_u32 s6, s6, s9")
    g.e("s_lshl_b32 s6, s6, 10")
    g.e(f"s_add_u32 s6, s6, {WS_BP:#x}")
    g.e("buffer_store_dword v42, v10, s[64:67], s6 offen sc1")
    g.e("v_cmp_eq_u32 vcc, 0, v0")
    g.e("s_and_b64 exec, exec, vcc")
    g.e("buffer_store_dwordx2 v[40:41], v10, s[64:67], s6 offen offset:512 sc1")
    g.lab("K1B_C1")
    g.e("s_mov_b64 exec, s[68:69]")
    signal(g, "K1B_SG", "s70", DBG_H, 256)
    stamp(g, 6)

LDS_CK = 0
LDS_QP = 0x20000
LDS_MX = 0x22000
LDS_LS = 0x22400
LDS_QB = 0x22800
LDS_TOTAL = 0x22C00
def fsw(r): return ((r & 3) << 2) | ((r >> 2) & 3)

def gemv16(g, abase, xb, acc):
    for i in range(16):
        t = 32 + 12 * (i & 1)
        for d in range(4):
            g.e(f"v_accvgpr_read_b32 v{t+d}, a{abase+4*i+d}")
        for d in range(4):
            g.e(f"v_lshlrev_b32 v{t+4+d}, 16, v{t+d}")
            g.e(f"v_and_b32 v{t+8+d}, s46, v{t+d}")
        for d in range(4):
            g.e(f"v_fmac_f32 v{acc+2*d}, v{t+4+d}, v{xb+i}")
            g.e(f"v_fmac_f32 v{acc+2*d+1}, v{t+8+d}, v{xb+i}")

def proj16(g, abase, lds_x, lds_red, s_dst):
    g.e("s_lshl_b32 s6, s5, 6")
    g.e(f"s_add_u32 s6, s6, {lds_x}")
    g.e("v_mov_b32 v10, s6")
    for qq in range(4):
        g.e(f"ds_read_b128 v[{64+4*qq}:{67+4*qq}], v10 offset:{16*qq}")
    for r in range(8): g.e(f"v_mov_b32 v{16+r}, 0")
    g.e("s_waitcnt lgkmcnt(0)")
    gemv16(g, abase, 64, 16)
    g.e("s_lshl_b32 s6, s5, 11")
    g.e("v_lshlrev_b32 v10, 5, v2")
    g.e("v_add_u32 v10, s6, v10")
    g.e(f"ds_write_b128 v10, v[16:19] offset:{lds_red}")
    g.e(f"ds_write_b128 v10, v[20:23] offset:{lds_red+16}")
    g.e("s_waitcnt lgkmcnt(0)")
    g.e("s_barrier")
    g.e("v_lshlrev_b32 v11, 3, v0")
    for w in range(4):
        g.e(f"ds_read_b64 v[{32+2*w}:{33+2*w}], v11 offset:{lds_red+2048*w}")
    g.e("s_waitcnt lgkmcnt(0)")
    for w in range(1, 4):
        g.e(f"v_add_f32 v32, v32, v{32+2*w}")
        g.e(f"v_add_f32 v33, v33, v{33+2*w}")
    g.e(f"buffer_store_dwordx2 v[32:33], v11, s[64:67], {s_dst} offen")

def k1_a(g):
    g.c("A path: s7=h s8=k(0..3) s9=a s10=b(attn) ; F roles: s14=fb (k>>1), s15=dhalf (k&1)")
    g.e("s_sub_u32 s8, s4, 4")
    g.e("s_lshl_b32 s9, s7, 2")
    g.e("s_add_u32 s9, s9, s8")
    g.e("s_lshr_b32 s10, s9, 6")
    g.e("s_lshr_b32 s14, s8, 1")
    g.e("s_and_b32 s15, s8, 1")
    prep1(g)
    g.e("s_lshl_b32 s12, s9, 17")
    srd(g, 56, P_CKV, 128 << 10, "s12")
    srd(g, 76, P_WUV, 4 << 20)
    srd(g, 80, P_WOA, 4 << 20)
    srd(g, 48, P_WOB, 4 << 20)
    g.e("v_lshlrev_b32 v12, 4, v2")
    g.e("v_and_b32 v5, 31, v2")
    g.e("v_lshrrev_b32 v6, 5, v2")
    g.e("s_lshl_b32 s12, s5, 15")
    for r in range(32):
        g.e(f"v_xor_b32 v10, {fsw(r & 15) << 4}, v12")
        g.e(f"s_add_u32 s13, s12, {r*1024}")
        g.e("s_mov_b32 m0, s13")
        g.e("s_nop 0")
        g.e(f"buffer_load_dwordx4 v10, s[56:59], s13 offen{NT} lds")
    g.e("s_lshl_b32 s6, s5, 7")
    g.e("v_lshrrev_b32 v13, 3, v2")
    g.e("v_lshlrev_b32 v13, 4, v13")
    g.e("v_add_u32 v13, s6, v13")
    g.e("v_lshlrev_b32 v13, 13, v13")
    g.e("s_lshl_b32 s6, s7, 8")
    g.e("s_lshl_b32 s13, s15, 7")
    g.e("s_add_u32 s6, s6, s13")
    g.e("v_and_b32 v10, 7, v2")
    g.e("v_lshlrev_b32 v10, 4, v10")
    g.e("v_add3_u32 v1, v13, s6, v10")
    g.e("s_mov_b32 s85, 0")
    g.e("s_lshl_b32 s84, s7, 17")
    g.e("s_lshl_b32 s13, s15, 16")
    g.e("s_add_u32 s84, s84, s13")
    g.e("s_lshl_b32 s13, s5, 14")
    g.e("s_add_u32 s84, s84, s13")
    g.e("s_mov_b32 s86, s84")
    for i in range(16):
        g.e(f"s_waitcnt vmcnt({WIN-1})")
        g.e(f"buffer_load_dwordx4 a[{4*i}:{4*i+3}], v1, s[76:79], s85 offen{NTW_}")
        g.e("s_add_u32 s85, s85, 8192")
    g.e("s_waitcnt vmcnt(0)")
    stamp(g, 1)
    poll(g, "K1A_P1", "0", DBG_QABS, 128)
    stamp(g, 4)
    QB = 128
    g.e("s_lshl_b32 s12, s10, 15")
    for j in range(32):
        if j % 4 == 0 and j: g.e("s_add_u32 s12, s12, 4096")
        g.e(f"buffer_load_dwordx4 v[{QB+4*j}:{QB+4*j+3}], v12, s[64:67], s12 offen offset:{WS_QABS+1024*(j%4)} sc1")
    g.e("v_and_b32 v7, 3, v5")
    g.e("v_lshlrev_b32 v7, 2, v7")
    g.e("v_bfe_u32 v8, v5, 2, 2")
    g.e("v_or_b32 v7, v7, v8")
    g.e("s_lshl_b32 s12, s5, 15")
    g.e("v_lshlrev_b32 v8, 10, v5")
    g.e("v_add_u32 v8, s12, v8")
    QA = 16
    for jj in range(8):
        g.e(f"v_or_b32 v9, {2*jj}, v6")
        g.e("v_xor_b32 v9, v9, v7")
        g.e(f"v_lshl_add_u32 v{QA+jj}, v9, 4, v8")
    TA, TB = 24, 96
    g.e("v_bfe_u32 v9, v2, 2, 2")
    g.e("v_bfe_u32 v10, v2, 4, 1")
    g.e("v_bfe_u32 v11, v2, 1, 1")
    g.e("v_lshl_add_u32 v10, v10, 1, v11")
    g.e("v_and_b32 v11, 1, v2")
    g.e("v_lshlrev_b32 v11, 3, v11")
    g.e("s_lshl_b32 s12, s5, 8")
    g.e("v_add_u32 v11, s12, v11")
    g.e("v_lshl_add_u32 v13, v6, 2, v9")
    g.e("v_lshl_add_u32 v11, v13, 10, v11")
    for s in range(2):
        g.e(f"v_or_b32 v13, {2*s}, v6")
        g.e("v_lshl_add_u32 v13, v9, 2, v13")
        for ct in range(4):
            g.e(f"v_or_b32 v14, {4*ct}, v10")
            g.e("v_xor_b32 v14, v14, v13")
            g.e(f"v_lshl_add_u32 v{TA+4*s+ct}, v14, 4, v11")
            g.e(f"v_add_u32 v{TB+4*s+ct}, 0x10000, v{TA+4*s+ct}")
    OA, SCR, PF = 192, 104, 120
    MRUN, LRUN = 7, 8
    stamp(g, 5)
    for j in range(32):
        a_, jj = j // 8, j % 8
        B = 32 + 4 * (j % 16)
        g.e(f"ds_read_b128 v[{B}:{B+3}], v{QA+jj} offset:{a_*256}")
        if j >= 8:
            jm = j - 8
            Bm = 32 + 4 * (jm % 16)
            g.e(f"s_waitcnt vmcnt({31-jm}) lgkmcnt(8)")
            c = "0" if jm == 0 else f"v[{SCR}:{SCR+15}]"
            g.e(f"v_mfma_f32_32x32x16_bf16 v[{SCR}:{SCR+15}], v[{Bm}:{Bm+3}], v[{QB+4*jm}:{QB+4*jm+3}], {c}")
    for jm in range(24, 32):
        Bm = 32 + 4 * (jm % 16)
        g.e(f"s_waitcnt vmcnt({31-jm}) lgkmcnt({31-jm})")
        g.e(f"v_mfma_f32_32x32x16_bf16 v[{SCR}:{SCR+15}], v[{Bm}:{Bm+3}], v[{QB+4*jm}:{QB+4*jm+3}], v[{SCR}:{SCR+15}]")
    g.e("s_nop 7")
    g.e("s_nop 3")
    round_scale(g, [SCR + k for k in range(16)], 32)
    g.e(f"v_max3_f32 v32, v{SCR}, v{SCR+1}, v{SCR+2}")
    for k in range(3, 15, 2):
        g.e(f"v_max3_f32 v32, v32, v{SCR+k}, v{SCR+k+1}")
    g.e(f"v_max_f32 v32, v32, v{SCR+15}")
    g.e("v_mov_b32 v33, v32")
    g.e("s_nop 1")
    g.e("v_permlane32_swap_b32 v32, v33")
    g.e("s_nop 1")
    g.e("v_max_f32 v32, v32, v33")
    g.e("s_lshl_b32 s12, s5, 7")
    g.e("v_lshlrev_b32 v10, 2, v5")
    g.e(f"v_add_u32 v11, {LDS_MX:#x}, v10")
    g.e("v_add_u32 v10, s12, v11")
    g.e("ds_write_b32 v10, v32")
    g.e("s_waitcnt lgkmcnt(0)")
    g.e("s_barrier")
    for w in range(4):
        g.e(f"ds_read_b32 v{32+w}, v11 offset:{128*w}")
    g.e("s_waitcnt lgkmcnt(0)")
    g.e("v_max3_f32 v32, v32, v33, v34")
    g.e(f"v_max_f32 v{MRUN}, v32, v35")
    g.e(f"v_mul_f32 v34, s47, v{MRUN}")
    g.e("v_sub_f32 v34, 0, v34")
    for k in range(16):
        g.e(f"v_fma_f32 v{SCR+k}, v{SCR+k}, s47, v34")
        g.e(f"v_exp_f32 v{SCR+k}, v{SCR+k}")
    g.e("s_nop 0")
    g.e(f"v_add_f32 v{LRUN}, v{SCR}, v{SCR+1}")
    for k in range(2, 16):
        g.e(f"v_add_f32 v{LRUN}, v{LRUN}, v{SCR+k}")
    for k in range(8):
        g.e(f"v_cvt_pk_bf16_f32 v{PF+k}, v{SCR+2*k}, v{SCR+2*k+1}")
    g.e("s_lshl_b32 s12, s5, 11")
    g.e(f"s_add_u32 s12, s12, {LDS_QP:#x}")
    g.e("v_add_u32 v10, s12, v12")
    g.e(f"ds_write_b128 v10, v[{PF}:{PF+3}]")
    g.e(f"ds_write_b128 v10, v[{PF+4}:{PF+7}] offset:1024")
    g.e("s_lshl_b32 s12, s5, 8")
    g.e(f"s_add_u32 s12, s12, {LDS_LS:#x}")
    g.e("v_lshl_add_u32 v10, v2, 2, s12")
    g.e(f"ds_write_b32 v10, v{LRUN}")
    g.e("s_waitcnt lgkmcnt(0)")
    g.e("s_barrier")
    stamp(g, 6)
    g.e(f"v_add_u32 v10, {LDS_QP:#x}, v12")
    def pv_reads(kg):
        t, f = kg >> 1, kg & 1
        PA = 32 + 4 * (kg & 1)
        BB = 40 + 16 * (kg & 1)
        g.e(f"ds_read_b128 v[{PA}:{PA+3}], v10 offset:{kg*1024}")
        for ct in range(4):
            for s in range(2):
                off = (32 * t + 16 * f + 8 * s) * 1024
                base = TA if off < 65536 else TB
                g.e(f"ds_read_b64_tr_b16 v[{BB+4*ct+2*s}:{BB+4*ct+2*s+1}], v{base+4*s+ct} offset:{off % 65536}")
    pv_reads(0)
    for kg in range(8):
        PA = 32 + 4 * (kg & 1)
        BB = 40 + 16 * (kg & 1)
        if kg < 7:
            pv_reads(kg + 1)
            g.e("s_waitcnt lgkmcnt(9)")
        else:
            g.e("s_waitcnt lgkmcnt(0)")
        for ct in range(4):
            c = "0" if kg == 0 else f"a[{OA+16*ct}:{OA+16*ct+15}]"
            g.e(f"v_mfma_f32_32x32x16_bf16 a[{OA+16*ct}:{OA+16*ct+15}], v[{PA}:{PA+3}], v[{BB+4*ct}:{BB+4*ct+3}], {c}")
    stamp(g, 7)
    g.e("s_lshl_b32 s12, s9, 15")
    g.e(f"s_add_u32 s12, s12, {WS_AO:#x}")
    g.e("s_lshl_b32 s13, s5, 8")
    g.e("s_add_u32 s12, s12, s13")
    g.e("v_lshlrev_b32 v10, 12, v6")
    g.e("v_lshl_add_u32 v10, v5, 2, v10")
    g.e("s_nop 7")
    g.e("s_nop 3")
    for r in range(16):
        head = (r & 3) + 8 * (r >> 2)
        g.e(f"s_add_u32 s13, s12, {head*1024}")
        for p in range(2):
            t = 32 + 4 * (r & 3) + 2 * p
            g.e(f"v_accvgpr_read_b32 v{t}, a{OA+32*p+r}")
            g.e(f"v_accvgpr_read_b32 v{t+1}, a{OA+32*p+16+r}")
            g.e(f"v_cvt_pk_bf16_f32 v{t}, v{t}, v{t+1}")
            g.e(f"buffer_store_dword v{t}, v10, s[64:67], s13 offen offset:{128*p} sc1")
    g.e("s_cmp_lg_u32 s5, 0")
    g.e("s_cbranch_scc1 K1A_ML1")
    g.e("v_cmp_gt_u32 vcc, 32, v2")
    g.e("s_and_saveexec_b64 s[68:69], vcc")
    g.e("v_lshlrev_b32 v10, 2, v2")
    g.e(f"v_add_u32 v10, {LDS_LS:#x}, v10")
    for qq in range(8):
        g.e(f"ds_read_b32 v{64+qq}, v10 offset:{128*qq}")
    g.e("s_waitcnt lgkmcnt(0)")
    for qq in range(1, 8):
        g.e(f"v_add_f32 v64, v64, v{64+qq}")
    g.e(f"v_mov_b32 v65, v64")
    g.e(f"v_mov_b32 v64, v{MRUN}")
    g.e("s_lshl_b32 s12, s9, 8")
    g.e(f"s_add_u32 s12, s12, {WS_AML:#x}")
    g.e("v_lshlrev_b32 v10, 3, v2")
    g.e("buffer_store_dwordx2 v[64:65], v10, s[64:67], s12 offen sc1")
    g.e("s_mov_b64 exec, s[68:69]")
    g.lab("K1A_ML1")
    g.e("s_lshl_b32 s71, s10, 2")
    signal(g, "K1A_S2", "s71", DBG_PA0, 1)
    stamp(g, 8)
    for i in range(16):
        g.e(f"buffer_load_dwordx4 a[{64+4*i}:{64+4*i+3}], v12, s[80:83], s84 offen{NTW_}")
        g.e("s_add_u32 s84, s84, 1024")
    for i in range(16):
        g.e(f"buffer_load_dwordx4 a[{128+4*i}:{128+4*i+3}], v12, s[48:51], s86 offen{NTW_}")
        g.e("s_add_u32 s86, s86, 1024")
    g.e("s_lshl_b32 s71, s14, 2")
    poll(g, "K1A_P2", "s71", DBG_PA0, 64)
    stamp(g, 9)
    g.e("v_lshlrev_b32 v10, 8, v2")
    g.e("s_lshl_b32 s6, s7, 3")
    g.e("s_lshl_b32 s13, s14, 14")
    g.e("s_add_u32 s6, s6, s13")
    g.e(f"s_add_u32 s6, s6, {WS_AML:#x}")
    g.e("buffer_load_dwordx2 v[16:17], v10, s[64:67], s6 offen sc1")
    g.e("s_lshl_b32 s6, s7, 10")
    g.e("s_lshl_b32 s13, s5, 19")
    g.e("s_add_u32 s6, s6, s13")
    g.e("s_lshl_b32 s13, s14, 21")
    g.e("s_add_u32 s6, s6, s13")
    g.e(f"s_add_u32 s6, s6, {WS_AO:#x}")
    for s_ in range(16):
        g.e(f"buffer_load_dwordx4 v[{128+4*s_}:{131+4*s_}], v12, s[64:67], s6 offen sc1")
        g.e("s_add_u32 s6, s6, 32768")
    g.e("s_waitcnt vmcnt(16)")
    def allred(reg, op):
        for sh in (1, 2, 4, 8):
            g.e("s_nop 1")
            g.e(f"{op}_dpp v{reg}, v{reg}, v{reg} row_ror:{sh} row_mask:0xf bank_mask:0xf")
        for sw in ("v_permlane16_swap_b32", "v_permlane32_swap_b32"):
            g.e(f"v_mov_b32 v19, v{reg}")
            g.e("s_nop 1")
            g.e(f"{sw} v{reg}, v19")
            g.e("s_nop 1")
            g.e(f"{op} v{reg}, v{reg}, v19")
    g.e("v_mov_b32 v18, v16")
    allred(18, "v_max_f32")
    g.e("v_sub_f32 v16, v16, v18")
    g.e("v_mul_f32 v16, s47, v16")
    g.e("v_exp_f32 v16, v16")
    g.e("s_nop 0")
    g.e("v_mul_f32 v17, v17, v16")
    allred(17, "v_add_f32")
    g.e("v_rcp_f32 v17, v17")
    g.e("s_nop 0")
    g.e("v_mul_f32 v16, v16, v17")
    for r in range(8): g.e(f"v_mov_b32 v{24+r}, 0")
    g.e("s_lshl_b32 s6, s5, 4")
    for s_ in range(16):
        g.e(f"s_add_u32 s13, s6, {s_}")
        g.e("v_readlane_b32 s12, v16, s13")
        g.e(f"s_waitcnt vmcnt({15 - s_})")
        for d in range(4):
            g.e(f"v_lshlrev_b32 v{32+d}, 16, v{128+4*s_+d}")
            g.e(f"v_and_b32 v{36+d}, s46, v{128+4*s_+d}")
        for d in range(4):
            g.e(f"v_fmac_f32 v{24+d}, s12, v{32+d}")
            g.e(f"v_fmac_f32 v{28+d}, s12, v{36+d}")
    g.e("v_lshrrev_b32 v10, 3, v2")
    g.e("v_and_b32 v11, 7, v2")
    g.e("v_lshlrev_b32 v11, 4, v11")
    g.e("v_lshl_add_u32 v10, v10, 8, v11")
    g.e("s_lshl_b32 s6, s5, 11")
    g.e("v_add_u32 v10, s6, v10")
    g.e("ds_write_b128 v10, v[24:27] offset:40960")
    g.e("ds_write_b128 v10, v[28:31] offset:41088")
    g.e("s_waitcnt lgkmcnt(0)")
    g.e("s_barrier")
    g.e("v_lshlrev_b32 v11, 3, v0")
    for w in range(4):
        g.e(f"ds_read_b64 v[{32+2*w}:{33+2*w}], v11 offset:{40960+2048*w}")
    g.e("s_waitcnt lgkmcnt(0)")
    for w in range(1, 4):
        g.e(f"v_add_f32 v32, v32, v{32+2*w}")
        g.e(f"v_add_f32 v33, v33, v{33+2*w}")
    g.e("ds_write_b64 v11, v[32:33]")
    g.e("s_waitcnt lgkmcnt(0)")
    g.e("s_barrier")
    g.e("s_lshl_b32 s6, s5, 9")
    g.e("v_lshrrev_b32 v10, 3, v2")
    g.e("v_lshlrev_b32 v10, 6, v10")
    g.e("v_add_u32 v10, s6, v10")
    for qq in range(4):
        g.e(f"ds_read_b128 v[{64+4*qq}:{67+4*qq}], v10 offset:{16*qq}")
    for r in range(8): g.e(f"v_mov_b32 v{16+r}, 0")
    g.e("s_waitcnt lgkmcnt(0)")
    gemv16(g, 0, 64, 16)
    g.e("s_lshl_b32 s6, s5, 11")
    g.e("v_lshlrev_b32 v10, 5, v2")
    g.e("v_add_u32 v10, s6, v10")
    g.e("ds_write_b128 v10, v[16:19] offset:4096")
    g.e("ds_write_b128 v10, v[20:23] offset:4112")
    g.e("s_waitcnt lgkmcnt(0)")
    g.e("s_barrier")
    g.e("s_cmp_lg_u32 s5, 0")
    g.e("s_cbranch_scc1 K1A_F2")
    g.e("v_lshlrev_b32 v10, 2, v2")
    for p in range(32):
        g.e(f"ds_read_b32 v{32+p}, v10 offset:{4096+256*p}")
    g.e("s_waitcnt lgkmcnt(0)")
    for p in range(1, 32):
        g.e(f"v_add_f32 v32, v32, v{32+p}")
    g.e("v_cvt_pk_bf16_f32 v32, v32, v32")
    g.e("v_and_b32 v32, s46, v32")
    g.e("ds_write_b32 v10, v32 offset:20480")
    g.lab("K1A_F2")
    g.e("s_waitcnt lgkmcnt(0)")
    g.e("s_barrier")
    g.e("s_lshl_b32 s87, s7, 1")
    g.e("s_add_u32 s87, s87, s15")
    g.e("s_lshl_b32 s87, s87, 11")
    g.e("s_lshl_b32 s13, s14, 17")
    g.e("s_add_u32 s87, s87, s13")
    g.e(f"s_add_u32 s87, s87, {WS_Y:#x}")
    proj16(g, 64, 20480, 24576, "s87")
    stamp(g, 10)
    poll(g, "K1A_P3", "s70", DBG_H, 1024)
    g.e("s_cmp_lg_u32 s5, 0")
    g.e("s_cbranch_scc1 K1A_F3")
    g.e("s_lshl_b32 s6, s14, 5")
    g.e("s_add_u32 s6, s6, s7")
    g.e("s_lshl_b32 s6, s6, 11")
    g.e(f"s_add_u32 s6, s6, {WS_BP:#x}")
    g.e("s_lshl_b32 s13, s15, 8")
    g.e("v_lshlrev_b32 v10, 2, v2")
    g.e("v_add_u32 v11, s13, v10")
    for sp in range(2):
        g.e(f"buffer_load_dword v{32+sp}, v11, s[64:67], s6 offen offset:{1024*sp} sc1")
        g.e(f"buffer_load_dwordx2 v[{36+2*sp}:{37+2*sp}], off, s[64:67], s6 offset:{1024*sp+512} sc1")
    g.e("s_waitcnt vmcnt(0)")
    g.e("v_max_f32 v40, v36, v38")
    for sp in range(2):
        g.e(f"v_sub_f32 v{36+2*sp}, v{36+2*sp}, v40")
        g.e(f"v_mul_f32 v{36+2*sp}, s47, v{36+2*sp}")
        g.e(f"v_exp_f32 v{36+2*sp}, v{36+2*sp}")
    g.e("s_nop 0")
    g.e("v_mul_f32 v41, v36, v37")
    g.e("v_fmac_f32 v41, v38, v39")
    g.e("v_mul_f32 v42, v36, v32")
    g.e("v_fmac_f32 v42, v38, v33")
    g.e("v_rcp_f32 v41, v41")
    g.e("s_nop 0")
    g.e("v_mul_f32 v42, v42, v41")
    g.e("v_cvt_pk_bf16_f32 v42, v42, v42")
    g.e("v_and_b32 v42, s46, v42")
    g.e("ds_write_b32 v10, v42 offset:20992")
    g.lab("K1A_F3")
    g.e("s_waitcnt vmcnt(0) lgkmcnt(0)")
    g.e("s_barrier")
    g.e("s_add_u32 s87, s87, 0x40000")
    proj16(g, 128, 20992, 32768, "s87")
    stamp(g, 11)

def k2(g):
    g.lab("k2_kernel")
    g.e("s_cmp_ge_u32 s2, 32")
    g.e("s_cbranch_scc1 K2_END")
    load_kernargs(g)
    g.e("v_lshrrev_b32 v1, 6, v0")
    g.e("v_and_b32 v2, 63, v0")
    g.e("v_readfirstlane_b32 s5, v1")
    g.e("s_lshr_b32 s8, s2, 4")
    g.e("s_bfe_u32 s9, s2, 0x10003")
    g.e("s_and_b32 s10, s2, 7")
    g.e("s_lshl_b32 s6, s9, 1")
    g.e("s_add_u32 s6, s6, s8")
    g.e("s_lshl_b32 s6, s6, 17")
    g.e("s_lshl_b32 s11, s5, 15")
    g.e("s_add_u32 s6, s6, s11")
    g.e("s_lshl_b32 s12, s10, 8")
    g.e("s_add_u32 s6, s6, s12")
    g.e(f"s_add_u32 s6, s6, {WS_Y:#x}")
    g.e("v_lshlrev_b32 v10, 2, v2")
    g.e("s_waitcnt lgkmcnt(0)")
    srd(g, 64, P_WS, WS_SIZE)
    srd(g, 48, P_OUT, 4096)
    for h in range(16):
        g.e(f"buffer_load_dword v{32+h}, v10, s[64:67], s6 offen")
        g.e("s_add_u32 s6, s6, 2048")
    g.e("s_waitcnt vmcnt(0)")
    for h in range(1, 16):
        g.e(f"v_add_f32 v32, v32, v{32+h}")
    g.e("v_lshlrev_b32 v11, 2, v0")
    g.e("ds_write_b32 v11, v32")
    g.e("s_waitcnt lgkmcnt(0)")
    g.e("s_barrier")
    g.e("s_cmp_lg_u32 s5, 0")
    g.e("s_cbranch_scc1 K2_END")
    for w in range(4):
        g.e(f"ds_read_b32 v{20+w}, v10 offset:{256*w}")
    g.e("s_waitcnt lgkmcnt(0)")
    g.e("v_add_f32 v20, v20, v21")
    g.e("v_add_f32 v22, v22, v23")
    g.e("v_add_f32 v20, v20, v22")
    g.e("v_cvt_pk_bf16_f32 v20, v20, v20")
    g.e("s_lshl_b32 s6, s2, 7")
    g.e("v_lshlrev_b32 v11, 1, v2")
    g.e("buffer_store_short v20, v11, s[48:51], s6 offen")
    g.lab("K2_END")
    g.e("s_endpgm")

def desc(name, vg, acc):
    return f""".amdhsa_kernel {name}
  .amdhsa_next_free_vgpr {vg}
  .amdhsa_next_free_sgpr 102
  .amdhsa_accum_offset {acc}
  .amdhsa_group_segment_fixed_size 0
  .amdhsa_kernarg_size 112
  .amdhsa_user_sgpr_count 2
  .amdhsa_user_sgpr_kernarg_segment_ptr 1
  .amdhsa_system_sgpr_workgroup_id_x 1
.end_amdhsa_kernel
"""

def main():
    out = HEADER
    out += f"; @launch kernel=k1_kernel grid=(256,1,1) block=(256,1,1) lds={LDS_TOTAL}\n"
    out += "; @launch kernel=k2_kernel grid=(32,1,1) block=(256,1,1) lds=1024\n"
    out += '.amdgcn_target "amdgcn-amd-amdhsa--gfx950"\n.text\n'
    for nm, fn in (("k1_kernel", k1), ("k2_kernel", k2)):
        g = G(); fn(g)
        out += f".globl {nm}\n.p2align 8\n.type {nm},@function\n" + g.text()
    out += '.section .rodata,"a"\n.p2align 6\n'
    out += desc("k1_kernel", 512, 256) + ".p2align 6\n" + desc("k2_kernel", 128, 128)
    dst = sys.argv[1] if len(sys.argv) > 1 else f"cdna_kernels/{NAME}.s"
    open(dst, "w").write(out)
    print("wrote", dst, len(out))
main()
```

```python
import sys, os
NAME = "concat_heads__compressed_kv_cla__sliding_block_cached__decode"
HEADER = open(f"cdna_kernels/{NAME}.s.ref").read().split("; Override launch geometry")[0]

LOG2E = 0x3FB8AA3B
SCALE = 0x3DB504F3
NEGBIG = 0xF149F2CA

WS_QABS = 0x0
WS_AML = 0x10000
WS_BP = 0x20000
WS_Y = 0x80000
WS_AO = 0x100000
WS_QP = 0x600000
WS_SIZE = 0x800000
STAMPS = os.environ.get("STAMPS", "0") == "1"
NT = " nt"
NTW_ = " nt" if os.environ.get("NTW", "1") == "1" else ""
WS_TS = 0x700000

class G:
    def __init__(self): self.L = []
    def e(self, s): self.L.append("    " + s)
    def lab(self, s): self.L.append(s + ":")
    def c(self, s): self.L.append("    ; " + s)
    def text(self): return "\n".join(self.L) + "\n"

_sid = [0]
def stamp(g, idx):
    if not STAMPS: return
    _sid[0] += 1
    L = f"ST_{_sid[0]}"
    g.e("s_cmp_lg_u32 s5, 0")
    g.e(f"s_cbranch_scc1 {L}")
    g.e("s_memrealtime s[90:91]")
    g.e("s_waitcnt lgkmcnt(0)")
    g.e("v_mov_b32 v14, s90")
    g.e("v_mov_b32 v15, s91")
    g.e("s_lshl_b32 s92, s2, 7")
    g.e(f"s_add_u32 s92, s92, {WS_TS + 8*idx}")
    g.e("buffer_store_dwordx2 v[14:15], off, s[64:67], s92")
    g.lab(L)

def load_kernargs(g):
    g.e("s_load_dwordx16 s[16:31], s[0:1], 0")
    g.e("s_load_dwordx8 s[32:39], s[0:1], 64")
    g.e("s_load_dwordx4 s[40:43], s[0:1], 96")
P_AX, P_CKV, P_WQA, P_WUK, P_WUV, P_WOA, P_BX, P_K, P_V, P_WQB, P_WOB, P_OUT, P_DBG, P_WS = [16 + 2 * i for i in range(14)]

def srd(g, d, p, size, off_lo=None):
    if off_lo is None:
        g.e(f"s_mov_b32 s{d}, s{p}")
        g.e(f"s_mov_b32 s{d+1}, s{p+1}")
    else:
        g.e(f"s_add_u32 s{d}, s{p}, {off_lo}")
        g.e(f"s_addc_u32 s{d+1}, s{p+1}, 0")
    g.e(f"s_mov_b32 s{d+2}, {size}")
    g.e(f"s_mov_b32 s{d+3}, 0x00020000")

def round_scale(g, regs, tmp):
    for i in range(0, len(regs), 2):
        a, b = regs[i], regs[i + 1]
        g.e(f"v_cvt_pk_bf16_f32 v{tmp}, v{a}, v{b}")
        g.e(f"v_lshlrev_b32 v{a}, 16, v{tmp}")
        g.e(f"v_and_b32 v{b}, s46, v{tmp}")
        g.e(f"v_mul_f32 v{a}, s45, v{a}")
        g.e(f"v_mul_f32 v{b}, s45, v{b}")
        g.e(f"v_cvt_pk_bf16_f32 v{tmp}, v{a}, v{b}")
        g.e(f"v_lshlrev_b32 v{a}, 16, v{tmp}")
        g.e(f"v_and_b32 v{b}, s46, v{tmp}")

def gemv_rows_bf16x(g, nb, wbase, xbase, acc, t0, wait_fn):
    for i in range(32):
        wait_fn(i)
        for bb in range(nb):
            xp = xbase + 16 * bb + i // 2
            lo, hi = t0 + 2 * bb, t0 + 2 * bb + 1
            if i % 2 == 0:
                g.e(f"v_and_b32 v{lo}, 0xffff, v{xp}")
                g.e(f"v_lshlrev_b32 v{hi}, 16, v{xp}")
            else:
                g.e(f"v_lshrrev_b32 v{lo}, 16, v{xp}")
                g.e(f"v_and_b32 v{hi}, s46, v{xp}")
        for bb in range(nb):
            lo, hi = t0 + 2 * bb, t0 + 2 * bb + 1
            for d in range(4):
                w = wbase + 4 * i + d
                g.e(f"v_dot2c_f32_bf16 v{acc[bb] + 2*d}, v{w}, v{lo}")
                g.e(f"v_dot2c_f32_bf16 v{acc[bb] + 2*d + 1}, v{w}, v{hi}")

def gemv_agpr_f32x(g, abase, xb, acc, t0):
    for i in range(32):
        t = t0 + 12 * (i & 1)
        for d in range(4):
            g.e(f"v_accvgpr_read_b32 v{t+d}, a{abase+4*i+d}")
        for d in range(4):
            g.e(f"v_lshlrev_b32 v{t+4+d}, 16, v{t+d}")
            g.e(f"v_and_b32 v{t+8+d}, s46, v{t+d}")
        for d in range(4):
            g.e(f"v_fmac_f32 v{acc+2*d}, v{t+4+d}, v{xb+i}")
            g.e(f"v_fmac_f32 v{acc+2*d+1}, v{t+8+d}, v{xb+i}")

def q_phase_loads(g, srd_x, srd_w, xoffs, s_h, wb, xb):
    g.e("s_lshl_b32 s6, s5, 7")
    g.e("v_lshlrev_b32 v5, 5, v4")
    g.e("v_add_u32 v5, s6, v5")
    g.e("v_lshlrev_b32 v6, 1, v5")
    n = 0
    for bb, xo in enumerate(xoffs):
        for q in range(4):
            g.e(f"buffer_load_dwordx4 v[{xb+16*bb+4*q}:{xb+3+16*bb+4*q}], v6, s[{srd_x}:{srd_x+3}], {xo} offen offset:{16*q}")
            n += 1
    g.e("v_lshlrev_b32 v7, 13, v5")
    g.e(f"s_lshl_b32 s6, {s_h}, 8")
    g.e("v_lshlrev_b32 v8, 4, v3")
    g.e("v_add3_u32 v7, v7, s6, v8")
    g.e("s_mov_b32 s6, 0")
    for i in range(32):
        g.e(f"buffer_load_dwordx4 v[{wb+4*i}:{wb+4*i+3}], v7, s[{srd_w}:{srd_w+3}], s6 offen{NTW_}")
        g.e("s_add_u32 s6, s6, 8192")
        n += 1
    return n

def proj_rows(g, abase, lds_x, lds_red, s_dst):
    ACC = 16
    for r in range(8): g.e(f"v_mov_b32 v{ACC+r}, 0")
    g.e("s_lshl_b32 s6, s5, 7")
    g.e(f"s_add_u32 s6, s6, {lds_x}")
    g.e("v_mov_b32 v10, s6")
    for q in range(8):
        g.e(f"ds_read_b128 v[{64+4*q}:{67+4*q}], v10 offset:{16*q}")
    g.e("s_waitcnt vmcnt(0) lgkmcnt(0)")
    gemv_agpr_f32x(g, abase, 64, ACC, 32)
    g.e("s_lshl_b32 s6, s5, 11")
    g.e(f"s_add_u32 s6, s6, {lds_red}")
    g.e("v_lshlrev_b32 v10, 5, v2")
    g.e("v_add_u32 v10, s6, v10")
    g.e(f"ds_write_b128 v10, v[{ACC}:{ACC+3}]")
    g.e(f"ds_write_b128 v10, v[{ACC+4}:{ACC+7}] offset:16")
    g.e("s_waitcnt lgkmcnt(0)")
    g.e("s_barrier")
    g.e("v_lshlrev_b32 v11, 3, v0")
    g.e(f"v_add_u32 v10, {lds_red}, v11")
    for w in range(4):
        g.e(f"ds_read_b64 v[{32+2*w}:{33+2*w}], v10 offset:{2048*w}")
    g.e("s_waitcnt lgkmcnt(0)")
    for w in range(1, 4):
        g.e(f"v_add_f32 v32, v32, v{32+2*w}")
        g.e(f"v_add_f32 v33, v33, v{33+2*w}")
    g.e(f"buffer_store_dwordx2 v[32:33], v11, s[64:67], {s_dst} offen")


DBG_QABS, DBG_PA0, DBG_H = 0, 64, 128
WIN = int(os.environ.get("WIN", "16"))
SLP = int(os.environ.get("SLP", "1"))
class LQ:
    def __init__(self, g): self.g = g; self.items = []; self.issued = 0
    def add(self, fn): self.items.append(fn); return len(self.items) - 1
    def issue(self, k=1):
        for _ in range(k):
            if self.issued < len(self.items):
                self.items[self.issued](); self.issued += 1
    def issue_to(self, n):
        while self.issued < min(n, len(self.items)): self.issue()
    def wait(self, idx):
        assert idx < self.issued, (idx, self.issued)
        self.g.e(f"s_waitcnt vmcnt({min(63, self.issued - idx - 1)})")

def poll(g, tag, soff, ioff, target, mask=None):
    g.e("s_cmp_lg_u32 s5, 0")
    g.e(f"s_cbranch_scc1 {tag}_OK")
    g.lab(f"{tag}_L")
    g.e(f"buffer_load_dword v11, off, s[72:75], {soff} offset:{ioff} sc1")
    g.e("s_waitcnt vmcnt(0)")
    g.e("v_readfirstlane_b32 s13, v11")
    if mask is not None:
        g.e("s_nop 0")
        g.e(f"s_and_b32 s13, s13, {mask}")
    g.e(f"s_cmp_ge_u32 s13, {target}")
    g.e(f"s_cbranch_scc1 {tag}_OK")
    g.e(f"s_sleep {SLP}")
    g.e(f"s_branch {tag}_L")
    g.lab(f"{tag}_OK")
    g.e("s_barrier")

def signal(g, tag, soff, ioff, val):
    g.e("s_waitcnt vmcnt(0)")
    g.e("s_barrier")
    g.e("s_cmp_lg_u32 s5, 0")
    g.e(f"s_cbranch_scc1 {tag}_S")
    g.e(f"v_mov_b32 v11, {val}")
    g.e("s_mov_b64 exec, 1")
    g.e(f"buffer_atomic_add v11, off, s[72:75], {soff} offset:{ioff} sc1")
    g.e("s_mov_b64 exec, -1")
    g.lab(f"{tag}_S")

def k1(g):
    g.lab("k1_kernel")
    g.e("s_cmp_ge_u32 s2, 256")
    g.e("s_cbranch_scc1 K1_END")
    load_kernargs(g)
    g.e("s_and_b32 s3, s2, 7")
    g.e("s_lshr_b32 s4, s2, 3")
    g.e("v_lshrrev_b32 v1, 6, v0")
    g.e("v_and_b32 v2, 63, v0")
    g.e("v_readfirstlane_b32 s5, v1")
    g.e(f"s_mov_b32 s45, {SCALE:#x}")
    g.e("s_mov_b32 s46, 0xffff0000")
    g.e(f"s_mov_b32 s47, {LOG2E:#x}")
    g.e("v_and_b32 v3, 15, v2")
    g.e("v_lshrrev_b32 v4, 4, v2")
    g.e("s_lshr_b32 s7, s4, 3")
    g.e("s_lshl_b32 s6, s3, 2")
    g.e("s_add_u32 s7, s7, s6")
    g.e("s_and_b32 s4, s4, 7")
    g.e("s_lshl_b32 s70, s7, 2")
    g.e("s_waitcnt lgkmcnt(0)")
    srd(g, 64, P_WS, WS_SIZE)
    srd(g, 72, P_DBG, 256)
    stamp(g, 0)
    g.e("s_cmp_ge_u32 s4, 4")
    g.e("s_cbranch_scc1 K1_A")
    k1_b(g)
    g.e("s_endpgm")
    g.lab("K1_A")
    k1_a(g)
    g.lab("K1_END")
    g.e("s_endpgm")

def sum_q(g, tag, mat, own_b, lds_off):
    g.e("s_lshl_b32 s12, s7, 13")
    g.e(f"s_add_u32 s12, s12, {WS_QP + mat*1024:#x}")
    if own_b:
        g.e("s_lshl_b32 s13, s8, 9")
        g.e("s_add_u32 s12, s12, s13")
        g.e("v_cmp_gt_u32 vcc, 128, v0")
        g.e("s_and_saveexec_b64 s[68:69], vcc")
        g.e(f"s_cbranch_execz SQ{tag}")
    g.e("v_lshlrev_b32 v10, 2, v0")
    g.e("s_add_u32 s13, s12, 4096")
    for k in range(4):
        g.e(f"buffer_load_dword v{224+k}, v10, s[64:67], {'s12' if k < 2 else 's13'} offen offset:{2048*(k%2)} sc1")
    g.e("s_waitcnt vmcnt(0)")
    g.e("v_add_f32 v224, v224, v225")
    g.e("v_add_f32 v226, v226, v227")
    g.e("v_add_f32 v224, v224, v226")
    g.e("v_cvt_pk_bf16_f32 v224, v224, v224")
    g.e("v_lshlrev_b32 v10, 1, v0")
    g.e(f"v_add_u32 v10, {lds_off}, v10")
    g.e("ds_write_b16 v10, v224")
    if own_b:
        g.lab(f"SQ{tag}")
        g.e("s_mov_b64 exec, s[68:69]")
    g.e("s_waitcnt lgkmcnt(0)")
    g.e("s_barrier")

def prep1(g):
    g.e("s_mov_b32 s71, s8")
    srd(g, 48, P_WQA, 4 << 20)
    srd(g, 52, P_WQB, 4 << 20)
    srd(g, 56, P_AX, 2048)
    srd(g, 60, P_BX, 2048)
    g.e("s_lshl_b32 s6, s71, 7")
    g.e("s_lshl_b32 s12, s5, 5")
    g.e("s_add_u32 s6, s6, s12")
    g.e("v_lshlrev_b32 v5, 3, v4")
    g.e("v_add_u32 v5, s6, v5")
    g.e("v_lshlrev_b32 v6, 1, v5")
    for mat, sx in enumerate((56, 60)):
        for bb in range(2):
            r = 16 + 8 * mat + 4 * bb
            g.e(f"buffer_load_dwordx4 v[{r}:{r+3}], v6, s[{sx}:{sx+3}], 0 offen offset:{1024*bb}")
    g.e("v_lshlrev_b32 v7, 13, v5")
    g.e("s_lshl_b32 s6, s7, 8")
    g.e("v_lshlrev_b32 v8, 4, v3")
    g.e("v_add3_u32 v7, v7, s6, v8")
    for mat, sw in enumerate((48, 52)):
        g.e("s_mov_b32 s6, 0")
        for i in range(8):
            r = 96 + 32 * mat + 4 * i
            g.e(f"buffer_load_dwordx4 v[{r}:{r+3}], v7, s[{sw}:{sw+3}], s6 offen{NTW_}")
            g.e("s_add_u32 s6, s6, 8192")
    AC = 48
    for r in range(32): g.e(f"v_mov_b32 v{AC+r}, 0")
    for mat in range(2):
        for i in range(8):
            g.e(f"s_waitcnt vmcnt({15 - (8*mat + i)})")
            for bb in range(2):
                xp = 16 + 8 * mat + 4 * bb + i // 2
                lo, hi = 80 + 2 * bb, 81 + 2 * bb
                if i % 2 == 0:
                    g.e(f"v_and_b32 v{lo}, 0xffff, v{xp}")
                    g.e(f"v_lshlrev_b32 v{hi}, 16, v{xp}")
                else:
                    g.e(f"v_lshrrev_b32 v{lo}, 16, v{xp}")
                    g.e(f"v_and_b32 v{hi}, s46, v{xp}")
            for bb in range(2):
                lo, hi = 80 + 2 * bb, 81 + 2 * bb
                for d in range(4):
                    w = 96 + 32 * mat + 4 * i + d
                    a = AC + 16 * mat + 8 * bb + 2 * d
                    g.e(f"v_dot2c_f32_bf16 v{a}, v{w}, v{lo}")
                    g.e(f"v_dot2c_f32_bf16 v{a+1}, v{w}, v{hi}")
    g.e("s_lshl_b32 s6, s5, 13")
    g.e("v_lshlrev_b32 v10, 11, v4")
    g.e("v_lshl_add_u32 v10, v3, 5, v10")
    g.e("v_add_u32 v10, s6, v10")
    for k in range(4):
        a = AC + 8 * k
        g.e(f"ds_write_b128 v10, v[{a}:{a+3}] offset:{512*k}")
        g.e(f"ds_write_b128 v10, v[{a+4}:{a+7}] offset:{512*k+16}")
    g.e("s_waitcnt lgkmcnt(0)")
    g.e("s_barrier")
    g.e("v_lshlrev_b32 v10, 3, v0")
    for p in range(16):
        g.e(f"ds_read_b64 v[{96+2*p}:{97+2*p}], v10 offset:{2048*p}")
    g.e("s_waitcnt lgkmcnt(0)")
    for p in range(1, 16):
        g.e(f"v_add_f32 v96, v96, v{96+2*p}")
        g.e(f"v_add_f32 v97, v97, v{97+2*p}")
    g.e("s_lshl_b32 s12, s7, 13")
    g.e("s_lshl_b32 s13, s71, 11")
    g.e("s_add_u32 s12, s12, s13")
    g.e(f"s_add_u32 s12, s12, {WS_QP:#x}")
    g.e("buffer_store_dwordx2 v[96:97], v10, s[64:67], s12 offen sc1")
    signal(g, "K1A_S0", "s70", DBG_H, 1)
    stamp(g, 2)

def wuk_loads(g):
    g.e("s_mov_b32 s71, s4")
    srd(g, 76, P_WUK, 4 << 20)
    g.e("s_lshl_b32 s12, s5, 5")
    g.e("s_lshl_b32 s6, s71, 7")
    g.e("s_add_u32 s6, s6, s12")
    g.e("v_add_u32 v9, s6, v3")
    g.e("v_lshlrev_b32 v9, 13, v9")
    g.e("s_lshl_b32 s6, s7, 8")
    g.e("v_lshlrev_b32 v10, 4, v4")
    g.e("v_add3_u32 v9, v9, s6, v10")
    g.e("s_mov_b32 s6, 0")
    for t in range(2):
        for j in range(4):
            g.e(f"buffer_load_dwordx4 v[{192+16*t+4*j}:{192+16*t+4*j+3}], v9, s[76:79], s6 offen offset:{64*j}{NTW_}")
        g.e("s_add_u32 s6, s6, 16*8192")

def prep2(g):
    poll(g, "K1A_P0", "s70", DBG_H, 4, mask=255)
    sum_q(g, "A", 0, False, LDS_QB)
    g.e("v_and_b32 v10, 1, v2")
    g.e("v_lshlrev_b32 v10, 8, v10")
    g.e("v_lshl_add_u32 v10, v4, 4, v10")
    g.e(f"v_add_u32 v10, {LDS_QB:#x}, v10")
    QF = 160
    for j in range(4):
        g.e(f"ds_read_b128 v[{QF+4*j}:{QF+4*j+3}], v10 offset:{64*j}")
    g.e("v_lshlrev_b32 v10, 15, v3")
    g.e("v_lshrrev_b32 v11, 1, v4")
    g.e("v_lshl_add_u32 v10, v11, 9, v10")
    g.e("v_and_b32 v11, 1, v4")
    g.e("v_lshl_add_u32 v10, v11, 3, v10")
    g.e("s_lshl_b32 s12, s7, 4")
    g.e("s_lshl_b32 s13, s5, 11")
    g.e("s_add_u32 s12, s12, s13")
    g.e("s_lshl_b32 s13, s71, 13")
    g.e("s_add_u32 s12, s12, s13")
    g.e("v_add_u32 v10, s12, v10")
    g.e("s_waitcnt lgkmcnt(0)")
    D = 176
    for t in range(2):
        for j in range(4):
            c = "0" if j == 0 else f"v[{D+4*t}:{D+4*t+3}]"
            g.e(f"v_mfma_f32_16x16x32_bf16 v[{D+4*t}:{D+4*t+3}], v[{192+16*t+4*j}:{192+16*t+4*j+3}], v[{QF+4*j}:{QF+4*j+3}], {c}")
    g.e("s_nop 7")
    for t in range(2):
        g.e(f"v_cvt_pk_bf16_f32 v{D+4*t}, v{D+4*t}, v{D+4*t+1}")
        g.e(f"v_cvt_pk_bf16_f32 v{D+4*t+1}, v{D+4*t+2}, v{D+4*t+3}")
    g.e("v_cmp_gt_u32 vcc, 2, v3")
    g.e("s_and_saveexec_b64 s[68:69], vcc")
    for t in range(2):
        g.e(f"buffer_store_dwordx2 v[{D+4*t}:{D+4*t+1}], v10, s[64:67], 0 offen offset:{WS_QABS+1024*t} sc1")
    g.e("s_mov_b64 exec, s[68:69]")
    signal(g, "K1A_S1", "0", DBG_QABS, 1)
    stamp(g, 8)


def k1_b(g):
    NTW = 16
    wuk_loads(g)
    g.e("s_lshr_b32 s8, s4, 1")
    g.e("s_and_b32 s9, s4, 1")
    g.e("s_lshl_b32 s10, s8, 5")
    g.e("s_add_u32 s10, s10, s7")
    g.e("s_lshl_b32 s11, s10, 21")
    g.e("s_lshl_b32 s12, s9, 18")
    g.e("s_add_u32 s11, s11, s12")
    g.e("s_add_u32 s11, s11, 6144*256")
    for d, p in ((52, P_K), (56, P_V)):
        g.e(f"s_add_u32 s{d}, s{p}, s11")
        g.e(f"s_addc_u32 s{d+1}, s{p+1}, 0")
        g.e(f"s_mov_b32 s{d+2}, {64*4096}")
        g.e(f"s_mov_b32 s{d+3}, 0x00020000")
    g.e("v_lshlrev_b32 v9, 4, v2")
    g.e("s_lshl_b32 s85, s5, 10")
    g.e("s_mov_b32 s86, s85")
    q = LQ(g)
    NU = 64
    VR = 32
    SC, NS, QF = 160, 64, 240
    def ld_k(i):
        g.e(f"buffer_load_dwordx4 a[{4*i}:{4*i+3}], v9, s[52:55], s85 offen{NT}")
        g.e("s_add_u32 s85, s85, 4096")
    iK = [q.add(lambda i=i: ld_k(i)) for i in range(NU)]
    def ld_v(i):
        r = 32 + 4 * (i % VR)
        g.e(f"buffer_load_dwordx4 v[{r}:{r+3}], v9, s[56:59], s86 offen{NT}")
        g.e("s_add_u32 s86, s86, 4096")
    iV = [q.add(lambda i=i: ld_v(i)) for i in range(NU)]
    KP = int(os.environ.get("KP", "32"))
    for k in range(NU):
        if k == KP:
            stamp(g, 1)
            prep2(g)
            stamp(g, 2)
        if k >= WIN and not (KP <= k < KP + WIN): q.wait(k - WIN)
        q.issue(1)
    sum_q(g, "B", 1, True, 8192)
    g.e("v_lshlrev_b32 v10, 4, v3")
    g.e(f"ds_read_b128 v[{QF}:{QF+3}], v10 offset:8192")
    g.e("s_waitcnt vmcnt(0)")
    q.issue(WIN)
    g.e("s_waitcnt lgkmcnt(0)")
    stamp(g, 3)
    T = 224
    for u0 in range(0, NU, 4):
        for k in range(4):
            for d in range(4):
                g.e(f"v_accvgpr_read_b32 v{T+4*k+d}, a{4*(u0+k)+d}")
        for k in range(4):
            g.e(f"v_dot2_f32_bf16 v{SC+u0+k}, v{T+4*k}, v{QF}, 0")
        for d in range(1, 4):
            for k in range(4):
                g.e(f"v_dot2c_f32_bf16 v{SC+u0+k}, v{T+4*k+d}, v{QF+d}")
        if u0 >= 4:
            for sh in (8, 4, 2, 1):
                for k in range(4):
                    r = SC + u0 - 4 + k
                    g.e(f"v_add_f32_dpp v{r}, v{r}, v{r} row_ror:{sh} row_mask:0xf bank_mask:0xf")
        q.issue_to(min(q.issued + 1, iV[VR - 1] + 1))
    g.e("s_nop 2")
    for sh in (8, 4, 2, 1):
        for k in range(4):
            r = SC + NU - 4 + k
            g.e(f"v_add_f32_dpp v{r}, v{r}, v{r} row_ror:{sh} row_mask:0xf bank_mask:0xf")
    q.issue_to(iV[VR - 1] + 1)
    stamp(g, 4)
    ACC = 16
    round_scale(g, [SC + k for k in range(NS)], 24)
    g.e(f"v_max3_f32 v24, v{SC}, v{SC+1}, v{SC+2}")
    for k in range(3, NS - 1, 2):
        g.e(f"v_max3_f32 v24, v24, v{SC+k}, v{SC+k+1}")
    g.e(f"v_max_f32 v24, v24, v{SC+NS-1}")
    for sw in ("v_permlane16_swap_b32", "v_permlane32_swap_b32"):
        g.e("v_mov_b32 v25, v24")
        g.e("s_nop 1")
        g.e(f"{sw} v24, v25")
        g.e("s_nop 1")
        g.e("v_max_f32 v24, v24, v25")
    g.e("v_mul_f32 v26, s47, v24")
    g.e("v_sub_f32 v26, 0, v26")
    g.e("v_mov_b32 v27, 0")
    for r in range(8): g.e(f"v_mov_b32 v{ACC+r}, 0")
    for k in range(NS):
        g.e(f"v_fma_f32 v{SC+k}, v{SC+k}, s47, v26")
        g.e(f"v_exp_f32 v{SC+k}, v{SC+k}")
    for i in range(NU):
        q.issue_to(iV[i] + 1)
        q.wait(iV[i])
        p = SC + i
        lo, hi = 28 + 2 * (i & 1), 29 + 2 * (i & 1)
        g.e(f"v_add_f32 v27, v27, v{p}")
        g.e(f"v_cvt_pk_bf16_f32 v{lo}, v{p}, 0")
        g.e(f"v_cvt_pk_bf16_f32 v{hi}, 0, v{p}")
        for d in range(4):
            w = 32 + 4 * (i % VR) + d
            g.e(f"v_dot2c_f32_bf16 v{ACC+2*d}, v{w}, v{lo}")
            g.e(f"v_dot2c_f32_bf16 v{ACC+2*d+1}, v{w}, v{hi}")
        if i + VR < NU: q.issue_to(iV[i + VR] + 1)
    stamp(g, 5)
    g.e("s_lshl_b32 s6, s5, 11")
    g.e("v_lshlrev_b32 v10, 9, v4")
    g.e("v_lshl_add_u32 v10, v3, 5, v10")
    g.e("v_add_u32 v10, s6, v10")
    g.e("s_nop 0")
    g.e(f"ds_write_b128 v10, v[{ACC}:{ACC+3}]")
    g.e(f"ds_write_b128 v10, v[{ACC+4}:{ACC+7}] offset:16")
    g.e("s_lshl_b32 s6, s5, 5")
    g.e("v_lshlrev_b32 v10, 3, v4")
    g.e("v_add_u32 v10, s6, v10")
    g.e("v_mov_b32 v25, v27")
    g.e("ds_write_b64 v10, v[24:25] offset:8704")
    g.e("s_waitcnt lgkmcnt(0)")
    g.e("s_barrier")
    g.e("v_cmp_gt_u32 vcc, 128, v0")
    g.e("s_and_saveexec_b64 s[68:69], vcc")
    g.e("s_cbranch_execz K1B_C1")
    g.e("v_mov_b32 v10, 0")
    for qq in range(8):
        g.e(f"ds_read_b128 v[{48+4*qq}:{51+4*qq}], v10 offset:{8704+16*qq}")
    g.e("v_lshlrev_b32 v10, 2, v0")
    for p in range(16):
        g.e(f"ds_read_b32 v{16+p}, v10 offset:{512*p}")
    g.e("s_waitcnt lgkmcnt(0)")
    g.e("v_max_f32 v40, v48, v56")
    g.e("v_max3_f32 v40, v40, v64, v72")
    for w in range(4):
        g.e(f"v_sub_f32 v{44+w}, v{48+8*w}, v40")
        g.e(f"v_mul_f32 v{44+w}, s47, v{44+w}")
        g.e(f"v_exp_f32 v{44+w}, v{44+w}")
    g.e("v_mov_b32 v41, 0")
    g.e("v_mov_b32 v42, 0")
    for w in range(4):
        g.e(f"v_add_f32 v{16+4*w}, v{16+4*w}, v{17+4*w}")
        g.e(f"v_add_f32 v{18+4*w}, v{18+4*w}, v{19+4*w}")
        g.e(f"v_add_f32 v{16+4*w}, v{16+4*w}, v{18+4*w}")
        g.e(f"v_fmac_f32 v42, v{16+4*w}, v{44+w}")
        g.e(f"v_add_f32 v{49+8*w}, v{49+8*w}, v{51+8*w}")
        g.e(f"v_add_f32 v{53+8*w}, v{53+8*w}, v{55+8*w}")
        g.e(f"v_add_f32 v{49+8*w}, v{49+8*w}, v{53+8*w}")
        g.e(f"v_fmac_f32 v41, v{49+8*w}, v{44+w}")
    g.e("s_lshl_b32 s6, s10, 1")
    g.e("s_add_u32 s6, s6, s9")
    g.e("s_lshl_b32 s6, s6, 10")
    g.e(f"s_add_u32 s6, s6, {WS_BP:#x}")
    g.e("buffer_store_dword v42, v10, s[64:67], s6 offen sc1")
    g.e("v_cmp_eq_u32 vcc, 0, v0")
    g.e("s_and_b64 exec, exec, vcc")
    g.e("buffer_store_dwordx2 v[40:41], v10, s[64:67], s6 offen offset:512 sc1")
    g.lab("K1B_C1")
    g.e("s_mov_b64 exec, s[68:69]")
    signal(g, "K1B_SG", "s70", DBG_H, 256)
    stamp(g, 6)

LDS_CK = 0
LDS_QP = 0x20000
LDS_MX = 0x22000
LDS_LS = 0x22400
LDS_QB = 0x22800
LDS_TOTAL = 0x22C00
def fsw(r): return ((r & 3) << 2) | ((r >> 2) & 3)

def gemv16(g, abase, xb, acc):
    for i in range(16):
        t = 32 + 12 * (i & 1)
        for d in range(4):
            g.e(f"v_accvgpr_read_b32 v{t+d}, a{abase+4*i+d}")
        for d in range(4):
            g.e(f"v_lshlrev_b32 v{t+4+d}, 16, v{t+d}")
            g.e(f"v_and_b32 v{t+8+d}, s46, v{t+d}")
        for d in range(4):
            g.e(f"v_fmac_f32 v{acc+2*d}, v{t+4+d}, v{xb+i}")
            g.e(f"v_fmac_f32 v{acc+2*d+1}, v{t+8+d}, v{xb+i}")

def proj16(g, vbase, lds_x, lds_red, s_dst):
    g.e("s_lshl_b32 s6, s5, 6")
    g.e(f"s_add_u32 s6, s6, {lds_x}")
    g.e("v_mov_b32 v10, s6")
    for qq in range(4):
        g.e(f"ds_read_b128 v[{64+4*qq}:{67+4*qq}], v10 offset:{16*qq}")
    for r in range(8): g.e(f"v_mov_b32 v{16+r}, 0")
    g.e("s_waitcnt lgkmcnt(0)")
    for i in range(16):
        g.e(f"v_lshrrev_b32 v{80+i}, 16, v{64+i}")
    for i in range(16):
        for d in range(4):
            g.e(f"v_dot2c_f32_bf16 v{16+2*d}, v{vbase+4*i+d}, v{80+i}")
            g.e(f"v_dot2c_f32_bf16 v{17+2*d}, v{vbase+4*i+d}, v{64+i}")
    g.e("s_lshl_b32 s6, s5, 11")
    g.e("v_lshlrev_b32 v10, 5, v2")
    g.e("v_add_u32 v10, s6, v10")
    g.e("s_nop 0")
    g.e(f"ds_write_b128 v10, v[16:19] offset:{lds_red}")
    g.e(f"ds_write_b128 v10, v[20:23] offset:{lds_red+16}")
    g.e("s_waitcnt lgkmcnt(0)")
    g.e("s_barrier")
    g.e("v_lshlrev_b32 v11, 3, v0")
    for w in range(4):
        g.e(f"ds_read_b64 v[{32+2*w}:{33+2*w}], v11 offset:{lds_red+2048*w}")
    g.e("s_waitcnt lgkmcnt(0)")
    for w in range(1, 4):
        g.e(f"v_add_f32 v32, v32, v{32+2*w}")
        g.e(f"v_add_f32 v33, v33, v{33+2*w}")
    g.e(f"buffer_store_dwordx2 v[32:33], v11, s[64:67], {s_dst} offen")

def k1_a(g):
    g.c("A path: s7=h s8=k(0..3) s9=a s10=b(attn) ; F roles: s14=fb (k>>1), s15=dhalf (k&1)")
    g.e("s_sub_u32 s8, s4, 4")
    g.e("s_lshl_b32 s9, s7, 2")
    g.e("s_add_u32 s9, s9, s8")
    g.e("s_lshr_b32 s10, s9, 6")
    g.e("s_lshr_b32 s14, s8, 1")
    g.e("s_and_b32 s15, s8, 1")
    prep1(g)
    g.e("s_lshl_b32 s12, s9, 17")
    srd(g, 56, P_CKV, 128 << 10, "s12")
    srd(g, 76, P_WUV, 4 << 20)
    srd(g, 80, P_WOA, 4 << 20)
    srd(g, 48, P_WOB, 4 << 20)
    g.e("v_lshlrev_b32 v12, 4, v2")
    g.e("v_and_b32 v5, 31, v2")
    g.e("v_lshrrev_b32 v6, 5, v2")
    g.e("s_lshl_b32 s12, s5, 15")
    for r in range(32):
        g.e(f"v_xor_b32 v10, {fsw(r & 15) << 4}, v12")
        g.e(f"s_add_u32 s13, s12, {r*1024}")
        g.e("s_mov_b32 m0, s13")
        g.e("s_nop 0")
        g.e(f"buffer_load_dwordx4 v10, s[56:59], s13 offen{NT} lds")
    g.e("s_lshl_b32 s6, s5, 7")
    g.e("v_lshrrev_b32 v13, 3, v2")
    g.e("v_lshlrev_b32 v13, 4, v13")
    g.e("v_add_u32 v13, s6, v13")
    g.e("v_lshlrev_b32 v13, 13, v13")
    g.e("s_lshl_b32 s6, s7, 8")
    g.e("s_lshl_b32 s13, s15, 7")
    g.e("s_add_u32 s6, s6, s13")
    g.e("v_and_b32 v10, 7, v2")
    g.e("v_lshlrev_b32 v10, 4, v10")
    g.e("v_add3_u32 v1, v13, s6, v10")
    g.e("s_mov_b32 s85, 0")
    g.e("s_lshl_b32 s84, s7, 17")
    g.e("s_lshl_b32 s13, s15, 16")
    g.e("s_add_u32 s84, s84, s13")
    g.e("s_lshl_b32 s13, s5, 14")
    g.e("s_add_u32 s84, s84, s13")
    g.e("s_mov_b32 s86, s84")
    WUVL = os.environ.get("WUVL", "0") == "1"
    if not WUVL:
        for i in range(16):
            g.e(f"s_waitcnt vmcnt({WIN-1})")
            g.e(f"buffer_load_dwordx4 a[{4*i}:{4*i+3}], v1, s[76:79], s85 offen{NTW_}")
            g.e("s_add_u32 s85, s85, 8192")
    g.e("s_waitcnt vmcnt(0)")
    stamp(g, 1)
    poll(g, "K1A_P1", "0", DBG_QABS, 128)
    stamp(g, 4)
    QB = 128
    g.e("s_lshl_b32 s12, s10, 15")
    for j in range(32):
        if j % 4 == 0 and j: g.e("s_add_u32 s12, s12, 4096")
        g.e(f"buffer_load_dwordx4 v[{QB+4*j}:{QB+4*j+3}], v12, s[64:67], s12 offen offset:{WS_QABS+1024*(j%4)} sc1")
    g.e("v_and_b32 v7, 3, v5")
    g.e("v_lshlrev_b32 v7, 2, v7")
    g.e("v_bfe_u32 v8, v5, 2, 2")
    g.e("v_or_b32 v7, v7, v8")
    g.e("s_lshl_b32 s12, s5, 15")
    g.e("v_lshlrev_b32 v8, 10, v5")
    g.e("v_add_u32 v8, s12, v8")
    QA = 16
    for jj in range(8):
        g.e(f"v_or_b32 v9, {2*jj}, v6")
        g.e("v_xor_b32 v9, v9, v7")
        g.e(f"v_lshl_add_u32 v{QA+jj}, v9, 4, v8")
    TA, TB = 24, 96
    g.e("v_bfe_u32 v9, v2, 2, 2")
    g.e("v_bfe_u32 v10, v2, 4, 1")
    g.e("v_bfe_u32 v11, v2, 1, 1")
    g.e("v_lshl_add_u32 v10, v10, 1, v11")
    g.e("v_and_b32 v11, 1, v2")
    g.e("v_lshlrev_b32 v11, 3, v11")
    g.e("s_lshl_b32 s12, s5, 8")
    g.e("v_add_u32 v11, s12, v11")
    g.e("v_lshl_add_u32 v13, v6, 2, v9")
    g.e("v_lshl_add_u32 v11, v13, 10, v11")
    for s in range(2):
        g.e(f"v_or_b32 v13, {2*s}, v6")
        g.e("v_lshl_add_u32 v13, v9, 2, v13")
        for ct in range(4):
            g.e(f"v_or_b32 v14, {4*ct}, v10")
            g.e("v_xor_b32 v14, v14, v13")
            g.e(f"v_lshl_add_u32 v{TA+4*s+ct}, v14, 4, v11")
            g.e(f"v_add_u32 v{TB+4*s+ct}, 0x10000, v{TA+4*s+ct}")
    OA, SCR, PF = 192, 104, 120
    MRUN, LRUN = 7, 8
    stamp(g, 5)
    for j in range(32):
        a_, jj = j // 8, j % 8
        B = 32 + 4 * (j % 16)
        g.e(f"ds_read_b128 v[{B}:{B+3}], v{QA+jj} offset:{a_*256}")
        if j >= 8:
            jm = j - 8
            Bm = 32 + 4 * (jm % 16)
            g.e(f"s_waitcnt vmcnt({31-jm}) lgkmcnt(8)")
            c = "0" if jm == 0 else f"v[{SCR}:{SCR+15}]"
            g.e(f"v_mfma_f32_32x32x16_bf16 v[{SCR}:{SCR+15}], v[{Bm}:{Bm+3}], v[{QB+4*jm}:{QB+4*jm+3}], {c}")
    for jm in range(24, 32):
        Bm = 32 + 4 * (jm % 16)
        g.e(f"s_waitcnt vmcnt({31-jm}) lgkmcnt({31-jm})")
        g.e(f"v_mfma_f32_32x32x16_bf16 v[{SCR}:{SCR+15}], v[{Bm}:{Bm+3}], v[{QB+4*jm}:{QB+4*jm+3}], v[{SCR}:{SCR+15}]")
    g.e("s_nop 7")
    g.e("s_nop 3")
    round_scale(g, [SCR + k for k in range(16)], 32)
    g.e(f"v_max3_f32 v32, v{SCR}, v{SCR+1}, v{SCR+2}")
    for k in range(3, 15, 2):
        g.e(f"v_max3_f32 v32, v32, v{SCR+k}, v{SCR+k+1}")
    g.e(f"v_max_f32 v32, v32, v{SCR+15}")
    g.e("v_mov_b32 v33, v32")
    g.e("s_nop 1")
    g.e("v_permlane32_swap_b32 v32, v33")
    g.e("s_nop 1")
    g.e("v_max_f32 v32, v32, v33")
    g.e("s_lshl_b32 s12, s5, 7")
    g.e("v_lshlrev_b32 v10, 2, v5")
    g.e(f"v_add_u32 v11, {LDS_MX:#x}, v10")
    g.e("v_add_u32 v10, s12, v11")
    g.e("ds_write_b32 v10, v32")
    g.e("s_waitcnt lgkmcnt(0)")
    g.e("s_barrier")
    for w in range(4):
        g.e(f"ds_read_b32 v{32+w}, v11 offset:{128*w}")
    g.e("s_waitcnt lgkmcnt(0)")
    g.e("v_max3_f32 v32, v32, v33, v34")
    g.e(f"v_max_f32 v{MRUN}, v32, v35")
    g.e(f"v_mul_f32 v34, s47, v{MRUN}")
    g.e("v_sub_f32 v34, 0, v34")
    for k in range(16):
        g.e(f"v_fma_f32 v{SCR+k}, v{SCR+k}, s47, v34")
        g.e(f"v_exp_f32 v{SCR+k}, v{SCR+k}")
    g.e("s_nop 0")
    g.e(f"v_add_f32 v{LRUN}, v{SCR}, v{SCR+1}")
    for k in range(2, 16):
        g.e(f"v_add_f32 v{LRUN}, v{LRUN}, v{SCR+k}")
    for k in range(8):
        g.e(f"v_cvt_pk_bf16_f32 v{PF+k}, v{SCR+2*k}, v{SCR+2*k+1}")
    g.e("s_lshl_b32 s12, s5, 11")
    g.e(f"s_add_u32 s12, s12, {LDS_QP:#x}")
    g.e("v_add_u32 v10, s12, v12")
    g.e(f"ds_write_b128 v10, v[{PF}:{PF+3}]")
    g.e(f"ds_write_b128 v10, v[{PF+4}:{PF+7}] offset:1024")
    g.e("s_lshl_b32 s12, s5, 8")
    g.e(f"s_add_u32 s12, s12, {LDS_LS:#x}")
    g.e("v_lshl_add_u32 v10, v2, 2, s12")
    g.e(f"ds_write_b32 v10, v{LRUN}")
    g.e("s_waitcnt lgkmcnt(0)")
    g.e("s_barrier")
    stamp(g, 6)
    g.e(f"v_add_u32 v10, {LDS_QP:#x}, v12")
    def pv_reads(kg):
        t, f = kg >> 1, kg & 1
        PA = 32 + 4 * (kg & 1)
        BB = 40 + 16 * (kg & 1)
        g.e(f"ds_read_b128 v[{PA}:{PA+3}], v10 offset:{kg*1024}")
        for ct in range(4):
            for s in range(2):
                off = (32 * t + 16 * f + 8 * s) * 1024
                base = TA if off < 65536 else TB
                g.e(f"ds_read_b64_tr_b16 v[{BB+4*ct+2*s}:{BB+4*ct+2*s+1}], v{base+4*s+ct} offset:{off % 65536}")
    pv_reads(0)
    for kg in range(8):
        PA = 32 + 4 * (kg & 1)
        BB = 40 + 16 * (kg & 1)
        if kg < 7:
            pv_reads(kg + 1)
            g.e("s_waitcnt lgkmcnt(9)")
        else:
            g.e("s_waitcnt lgkmcnt(0)")
        for ct in range(4):
            c = "0" if kg == 0 else f"a[{OA+16*ct}:{OA+16*ct+15}]"
            g.e(f"v_mfma_f32_32x32x16_bf16 a[{OA+16*ct}:{OA+16*ct+15}], v[{PA}:{PA+3}], v[{BB+4*ct}:{BB+4*ct+3}], {c}")
    stamp(g, 7)
    g.e("s_lshl_b32 s12, s9, 15")
    g.e(f"s_add_u32 s12, s12, {WS_AO:#x}")
    g.e("s_lshl_b32 s13, s5, 8")
    g.e("s_add_u32 s12, s12, s13")
    g.e("v_lshlrev_b32 v10, 12, v6")
    g.e("v_lshl_add_u32 v10, v5, 2, v10")
    g.e("s_nop 7")
    g.e("s_nop 3")
    for r in range(16):
        head = (r & 3) + 8 * (r >> 2)
        g.e(f"s_add_u32 s13, s12, {head*1024}")
        for p in range(2):
            t = 32 + 4 * (r & 3) + 2 * p
            g.e(f"v_accvgpr_read_b32 v{t}, a{OA+32*p+r}")
            g.e(f"v_accvgpr_read_b32 v{t+1}, a{OA+32*p+16+r}")
            g.e(f"v_cvt_pk_bf16_f32 v{t}, v{t}, v{t+1}")
            g.e(f"buffer_store_dword v{t}, v10, s[64:67], s13 offen offset:{128*p} sc1")
    g.e("s_cmp_lg_u32 s5, 0")
    g.e("s_cbranch_scc1 K1A_ML1")
    g.e("v_cmp_gt_u32 vcc, 32, v2")
    g.e("s_and_saveexec_b64 s[68:69], vcc")
    g.e("v_lshlrev_b32 v10, 2, v2")
    g.e(f"v_add_u32 v10, {LDS_LS:#x}, v10")
    for qq in range(8):
        g.e(f"ds_read_b32 v{64+qq}, v10 offset:{128*qq}")
    g.e("s_waitcnt lgkmcnt(0)")
    for qq in range(1, 8):
        g.e(f"v_add_f32 v64, v64, v{64+qq}")
    g.e(f"v_mov_b32 v65, v64")
    g.e(f"v_mov_b32 v64, v{MRUN}")
    g.e("s_lshl_b32 s12, s9, 8")
    g.e(f"s_add_u32 s12, s12, {WS_AML:#x}")
    g.e("v_lshlrev_b32 v10, 3, v2")
    g.e("buffer_store_dwordx2 v[64:65], v10, s[64:67], s12 offen sc1")
    g.e("s_mov_b64 exec, s[68:69]")
    g.lab("K1A_ML1")
    g.e("s_lshl_b32 s71, s10, 2")
    signal(g, "K1A_S2", "s71", DBG_PA0, 1)
    stamp(g, 8)
    if WUVL:
        for i in range(16):
            g.e(f"buffer_load_dwordx4 a[{4*i}:{4*i+3}], v1, s[76:79], s85 offen{NTW_}")
            g.e("s_add_u32 s85, s85, 8192")
    for i in range(16):
        g.e(f"buffer_load_dwordx4 v[{128+4*i}:{128+4*i+3}], v12, s[80:83], s84 offen{NTW_}")
        g.e("s_add_u32 s84, s84, 1024")
    for i in range(16):
        g.e(f"buffer_load_dwordx4 v[{192+4*i}:{192+4*i+3}], v12, s[48:51], s86 offen{NTW_}")
        g.e("s_add_u32 s86, s86, 1024")
    g.e("s_lshl_b32 s71, s14, 2")
    poll(g, "K1A_P2", "s71", DBG_PA0, 64)
    stamp(g, 9)
    g.e("v_lshlrev_b32 v10, 8, v2")
    g.e("s_lshl_b32 s6, s7, 3")
    g.e("s_lshl_b32 s13, s14, 14")
    g.e("s_add_u32 s6, s6, s13")
    g.e(f"s_add_u32 s6, s6, {WS_AML:#x}")
    g.e("buffer_load_dwordx2 v[16:17], v10, s[64:67], s6 offen sc1")
    g.e("s_lshl_b32 s6, s7, 10")
    g.e("s_lshl_b32 s13, s5, 19")
    g.e("s_add_u32 s6, s6, s13")
    g.e("s_lshl_b32 s13, s14, 21")
    g.e("s_add_u32 s6, s6, s13")
    g.e(f"s_add_u32 s6, s6, {WS_AO:#x}")
    for s_ in range(16):
        g.e(f"buffer_load_dwordx4 v[{64+4*s_}:{67+4*s_}], v12, s[64:67], s6 offen sc1")
        g.e("s_add_u32 s6, s6, 32768")
    g.e("s_waitcnt vmcnt(16)")
    def allred(reg, op):
        for sh in (1, 2, 4, 8):
            g.e("s_nop 1")
            g.e(f"{op}_dpp v{reg}, v{reg}, v{reg} row_ror:{sh} row_mask:0xf bank_mask:0xf")
        for sw in ("v_permlane16_swap_b32", "v_permlane32_swap_b32"):
            g.e(f"v_mov_b32 v19, v{reg}")
            g.e("s_nop 1")
            g.e(f"{sw} v{reg}, v19")
            g.e("s_nop 1")
            g.e(f"{op} v{reg}, v{reg}, v19")
    g.e("v_mov_b32 v18, v16")
    allred(18, "v_max_f32")
    g.e("v_sub_f32 v16, v16, v18")
    g.e("v_mul_f32 v16, s47, v16")
    g.e("v_exp_f32 v16, v16")
    g.e("s_nop 0")
    g.e("v_mul_f32 v17, v17, v16")
    allred(17, "v_add_f32")
    g.e("v_rcp_f32 v17, v17")
    g.e("s_nop 0")
    g.e("v_mul_f32 v16, v16, v17")
    for r in range(8): g.e(f"v_mov_b32 v{24+r}, 0")
    g.e("s_lshl_b32 s6, s5, 4")
    for s_ in range(16):
        g.e(f"s_add_u32 s13, s6, {s_}")
        g.e("v_readlane_b32 s12, v16, s13")
        g.e(f"s_waitcnt vmcnt({15 - s_})")
        for d in range(4):
            g.e(f"v_lshlrev_b32 v{32+d}, 16, v{64+4*s_+d}")
            g.e(f"v_and_b32 v{36+d}, s46, v{64+4*s_+d}")
        for d in range(4):
            g.e(f"v_fmac_f32 v{24+d}, s12, v{32+d}")
            g.e(f"v_fmac_f32 v{28+d}, s12, v{36+d}")
    g.e("v_lshrrev_b32 v10, 3, v2")
    g.e("v_and_b32 v11, 7, v2")
    g.e("v_lshlrev_b32 v11, 4, v11")
    g.e("v_lshl_add_u32 v10, v10, 8, v11")
    g.e("s_lshl_b32 s6, s5, 11")
    g.e("v_add_u32 v10, s6, v10")
    g.e("ds_write_b128 v10, v[24:27] offset:40960")
    g.e("ds_write_b128 v10, v[28:31] offset:41088")
    g.e("s_waitcnt lgkmcnt(0)")
    g.e("s_barrier")
    g.e("v_lshlrev_b32 v11, 3, v0")
    for w in range(4):
        g.e(f"ds_read_b64 v[{32+2*w}:{33+2*w}], v11 offset:{40960+2048*w}")
    g.e("s_waitcnt lgkmcnt(0)")
    for w in range(1, 4):
        g.e(f"v_add_f32 v32, v32, v{32+2*w}")
        g.e(f"v_add_f32 v33, v33, v{33+2*w}")
    g.e("ds_write_b64 v11, v[32:33]")
    g.e("s_waitcnt lgkmcnt(0)")
    g.e("s_barrier")
    g.e("s_lshl_b32 s6, s5, 9")
    g.e("v_lshrrev_b32 v10, 3, v2")
    g.e("v_lshlrev_b32 v10, 6, v10")
    g.e("v_add_u32 v10, s6, v10")
    for qq in range(4):
        g.e(f"ds_read_b128 v[{64+4*qq}:{67+4*qq}], v10 offset:{16*qq}")
    for r in range(8): g.e(f"v_mov_b32 v{16+r}, 0")
    g.e("s_waitcnt lgkmcnt(0)")
    gemv16(g, 0, 64, 16)
    g.e("s_lshl_b32 s6, s5, 11")
    g.e("v_lshlrev_b32 v10, 5, v2")
    g.e("v_add_u32 v10, s6, v10")
    g.e("ds_write_b128 v10, v[16:19] offset:4096")
    g.e("ds_write_b128 v10, v[20:23] offset:4112")
    g.e("s_waitcnt lgkmcnt(0)")
    g.e("s_barrier")
    g.e("s_cmp_lg_u32 s5, 0")
    g.e("s_cbranch_scc1 K1A_F2")
    g.e("v_lshlrev_b32 v10, 2, v2")
    for p in range(32):
        g.e(f"ds_read_b32 v{32+p}, v10 offset:{4096+256*p}")
    g.e("s_waitcnt lgkmcnt(0)")
    for p in range(1, 32):
        g.e(f"v_add_f32 v32, v32, v{32+p}")
    g.e("v_cvt_pk_bf16_f32 v32, v32, v32")
    g.e("v_and_b32 v32, s46, v32")
    g.e("ds_write_b32 v10, v32 offset:20480")
    g.lab("K1A_F2")
    g.e("s_waitcnt lgkmcnt(0)")
    g.e("s_barrier")
    g.e("s_lshl_b32 s87, s7, 1")
    g.e("s_add_u32 s87, s87, s15")
    g.e("s_lshl_b32 s87, s87, 11")
    g.e("s_lshl_b32 s13, s14, 17")
    g.e("s_add_u32 s87, s87, s13")
    g.e(f"s_add_u32 s87, s87, {WS_Y:#x}")
    proj16(g, 128, 20480, 24576, "s87")
    stamp(g, 10)
    poll(g, "K1A_P3", "s70", DBG_H, 1024)
    g.e("s_cmp_lg_u32 s5, 0")
    g.e("s_cbranch_scc1 K1A_F3")
    g.e("s_lshl_b32 s6, s14, 5")
    g.e("s_add_u32 s6, s6, s7")
    g.e("s_lshl_b32 s6, s6, 11")
    g.e(f"s_add_u32 s6, s6, {WS_BP:#x}")
    g.e("s_lshl_b32 s13, s15, 8")
    g.e("v_lshlrev_b32 v10, 2, v2")
    g.e("v_add_u32 v11, s13, v10")
    for sp in range(2):
        g.e(f"buffer_load_dword v{32+sp}, v11, s[64:67], s6 offen offset:{1024*sp} sc1")
        g.e(f"buffer_load_dwordx2 v[{36+2*sp}:{37+2*sp}], off, s[64:67], s6 offset:{1024*sp+512} sc1")
    g.e("s_waitcnt vmcnt(0)")
    g.e("v_max_f32 v40, v36, v38")
    for sp in range(2):
        g.e(f"v_sub_f32 v{36+2*sp}, v{36+2*sp}, v40")
        g.e(f"v_mul_f32 v{36+2*sp}, s47, v{36+2*sp}")
        g.e(f"v_exp_f32 v{36+2*sp}, v{36+2*sp}")
    g.e("s_nop 0")
    g.e("v_mul_f32 v41, v36, v37")
    g.e("v_fmac_f32 v41, v38, v39")
    g.e("v_mul_f32 v42, v36, v32")
    g.e("v_fmac_f32 v42, v38, v33")
    g.e("v_rcp_f32 v41, v41")
    g.e("s_nop 0")
    g.e("v_mul_f32 v42, v42, v41")
    g.e("v_cvt_pk_bf16_f32 v42, v42, v42")
    g.e("v_and_b32 v42, s46, v42")
    g.e("ds_write_b32 v10, v42 offset:20992")
    g.lab("K1A_F3")
    g.e("s_waitcnt vmcnt(0) lgkmcnt(0)")
    g.e("s_barrier")
    g.e("s_add_u32 s87, s87, 0x40000")
    proj16(g, 192, 20992, 32768, "s87")
    stamp(g, 11)

def k2(g):
    g.lab("k2_kernel")
    g.e("s_cmp_ge_u32 s2, 32")
    g.e("s_cbranch_scc1 K2_END")
    load_kernargs(g)
    g.e("v_lshrrev_b32 v1, 6, v0")
    g.e("v_and_b32 v2, 63, v0")
    g.e("v_readfirstlane_b32 s5, v1")
    g.e("s_lshr_b32 s8, s2, 4")
    g.e("s_bfe_u32 s9, s2, 0x10003")
    g.e("s_and_b32 s10, s2, 7")
    g.e("s_lshl_b32 s6, s9, 1")
    g.e("s_add_u32 s6, s6, s8")
    g.e("s_lshl_b32 s6, s6, 17")
    g.e("s_lshl_b32 s11, s5, 15")
    g.e("s_add_u32 s6, s6, s11")
    g.e("s_lshl_b32 s12, s10, 8")
    g.e("s_add_u32 s6, s6, s12")
    g.e(f"s_add_u32 s6, s6, {WS_Y:#x}")
    g.e("v_lshlrev_b32 v10, 2, v2")
    g.e("s_waitcnt lgkmcnt(0)")
    srd(g, 64, P_WS, WS_SIZE)
    srd(g, 48, P_OUT, 4096)
    for h in range(16):
        g.e(f"buffer_load_dword v{32+h}, v10, s[64:67], s6 offen")
        g.e("s_add_u32 s6, s6, 2048")
    g.e("s_waitcnt vmcnt(0)")
    for h in range(1, 16):
        g.e(f"v_add_f32 v32, v32, v{32+h}")
    g.e("v_lshlrev_b32 v11, 2, v0")
    g.e("ds_write_b32 v11, v32")
    g.e("s_waitcnt lgkmcnt(0)")
    g.e("s_barrier")
    g.e("s_cmp_lg_u32 s5, 0")
    g.e("s_cbranch_scc1 K2_END")
    for w in range(4):
        g.e(f"ds_read_b32 v{20+w}, v10 offset:{256*w}")
    g.e("s_waitcnt lgkmcnt(0)")
    g.e("v_add_f32 v20, v20, v21")
    g.e("v_add_f32 v22, v22, v23")
    g.e("v_add_f32 v20, v20, v22")
    g.e("v_cvt_pk_bf16_f32 v20, v20, v20")
    g.e("s_lshl_b32 s6, s2, 7")
    g.e("v_lshlrev_b32 v11, 1, v2")
    g.e("buffer_store_short v20, v11, s[48:51], s6 offen")
    g.lab("K2_END")
    g.e("s_endpgm")

def desc(name, vg, acc):
    return f""".amdhsa_kernel {name}
  .amdhsa_next_free_vgpr {vg}
  .amdhsa_next_free_sgpr 102
  .amdhsa_accum_offset {acc}
  .amdhsa_group_segment_fixed_size 0
  .amdhsa_kernarg_size 112
  .amdhsa_user_sgpr_count 2
  .amdhsa_user_sgpr_kernarg_segment_ptr 1
  .amdhsa_system_sgpr_workgroup_id_x 1
.end_amdhsa_kernel
"""

def main():
    out = HEADER
    out += f"; @launch kernel=k1_kernel grid=(256,1,1) block=(256,1,1) lds={LDS_TOTAL}\n"
    out += "; @launch kernel=k2_kernel grid=(32,1,1) block=(256,1,1) lds=1024\n"
    out += '.amdgcn_target "amdgcn-amd-amdhsa--gfx950"\n.text\n'
    for nm, fn in (("k1_kernel", k1), ("k2_kernel", k2)):
        g = G(); fn(g)
        out += f".globl {nm}\n.p2align 8\n.type {nm},@function\n" + g.text()
    out += '.section .rodata,"a"\n.p2align 6\n'
    out += desc("k1_kernel", 512, 256) + ".p2align 6\n" + desc("k2_kernel", 128, 128)
    dst = sys.argv[1] if len(sys.argv) > 1 else f"cdna_kernels/{NAME}.s"
    open(dst, "w").write(out)
    print("wrote", dst, len(out))
main()
```

```python
import sys, os
NAME = "concat_heads__compressed_kv_cla__sliding_block_cached__decode"
HEADER = open(f"cdna_kernels/{NAME}.s.ref").read().split("; Override launch geometry")[0]

LOG2E = 0x3FB8AA3B
SCALE = 0x3DB504F3
NEGBIG = 0xF149F2CA

WS_QABS = 0x0
WS_AML = 0x10000
WS_BP = 0x20000
WS_Y = 0x80000
WS_AO = 0x100000
WS_QP = 0x600000
WS_SIZE = 0x800000
STAMPS = os.environ.get("STAMPS", "0") == "1"
NT = " nt"
NTW_ = " nt" if os.environ.get("NTW", "1") == "1" else ""
WS_TS = 0x700000

class G:
    def __init__(self): self.L = []
    def e(self, s): self.L.append("    " + s)
    def lab(self, s): self.L.append(s + ":")
    def c(self, s): self.L.append("    ; " + s)
    def text(self): return "\n".join(self.L) + "\n"

_sid = [0]
def stamp(g, idx):
    if not STAMPS: return
    _sid[0] += 1
    L = f"ST_{_sid[0]}"
    g.e("s_cmp_lg_u32 s5, 0")
    g.e(f"s_cbranch_scc1 {L}")
    g.e("s_memrealtime s[90:91]")
    g.e("s_waitcnt lgkmcnt(0)")
    g.e("v_mov_b32 v14, s90")
    g.e("v_mov_b32 v15, s91")
    g.e("s_lshl_b32 s92, s2, 7")
    g.e(f"s_add_u32 s92, s92, {WS_TS + 8*idx}")
    g.e("buffer_store_dwordx2 v[14:15], off, s[64:67], s92")
    g.lab(L)

def load_kernargs(g):
    g.e("s_load_dwordx16 s[16:31], s[0:1], 0")
    g.e("s_load_dwordx8 s[32:39], s[0:1], 64")
    g.e("s_load_dwordx4 s[40:43], s[0:1], 96")
P_AX, P_CKV, P_WQA, P_WUK, P_WUV, P_WOA, P_BX, P_K, P_V, P_WQB, P_WOB, P_OUT, P_DBG, P_WS = [16 + 2 * i for i in range(14)]

def srd(g, d, p, size, off_lo=None):
    if off_lo is None:
        g.e(f"s_mov_b32 s{d}, s{p}")
        g.e(f"s_mov_b32 s{d+1}, s{p+1}")
    else:
        g.e(f"s_add_u32 s{d}, s{p}, {off_lo}")
        g.e(f"s_addc_u32 s{d+1}, s{p+1}, 0")
    g.e(f"s_mov_b32 s{d+2}, {size}")
    g.e(f"s_mov_b32 s{d+3}, 0x00020000")

def round_scale(g, regs, tmp):
    for i in range(0, len(regs), 2):
        a, b = regs[i], regs[i + 1]
        g.e(f"v_cvt_pk_bf16_f32 v{tmp}, v{a}, v{b}")
        g.e(f"v_lshlrev_b32 v{a}, 16, v{tmp}")
        g.e(f"v_and_b32 v{b}, s46, v{tmp}")
        g.e(f"v_mul_f32 v{a}, s45, v{a}")
        g.e(f"v_mul_f32 v{b}, s45, v{b}")
        g.e(f"v_cvt_pk_bf16_f32 v{tmp}, v{a}, v{b}")
        g.e(f"v_lshlrev_b32 v{a}, 16, v{tmp}")
        g.e(f"v_and_b32 v{b}, s46, v{tmp}")

def gemv_rows_bf16x(g, nb, wbase, xbase, acc, t0, wait_fn):
    for i in range(32):
        wait_fn(i)
        for bb in range(nb):
            xp = xbase + 16 * bb + i // 2
            lo, hi = t0 + 2 * bb, t0 + 2 * bb + 1
            if i % 2 == 0:
                g.e(f"v_and_b32 v{lo}, 0xffff, v{xp}")
                g.e(f"v_lshlrev_b32 v{hi}, 16, v{xp}")
            else:
                g.e(f"v_lshrrev_b32 v{lo}, 16, v{xp}")
                g.e(f"v_and_b32 v{hi}, s46, v{xp}")
        for bb in range(nb):
            lo, hi = t0 + 2 * bb, t0 + 2 * bb + 1
            for d in range(4):
                w = wbase + 4 * i + d
                g.e(f"v_dot2c_f32_bf16 v{acc[bb] + 2*d}, v{w}, v{lo}")
                g.e(f"v_dot2c_f32_bf16 v{acc[bb] + 2*d + 1}, v{w}, v{hi}")

def gemv_agpr_f32x(g, abase, xb, acc, t0):
    for i in range(32):
        t = t0 + 12 * (i & 1)
        for d in range(4):
            g.e(f"v_accvgpr_read_b32 v{t+d}, a{abase+4*i+d}")
        for d in range(4):
            g.e(f"v_lshlrev_b32 v{t+4+d}, 16, v{t+d}")
            g.e(f"v_and_b32 v{t+8+d}, s46, v{t+d}")
        for d in range(4):
            g.e(f"v_fmac_f32 v{acc+2*d}, v{t+4+d}, v{xb+i}")
            g.e(f"v_fmac_f32 v{acc+2*d+1}, v{t+8+d}, v{xb+i}")

def q_phase_loads(g, srd_x, srd_w, xoffs, s_h, wb, xb):
    g.e("s_lshl_b32 s6, s5, 7")
    g.e("v_lshlrev_b32 v5, 5, v4")
    g.e("v_add_u32 v5, s6, v5")
    g.e("v_lshlrev_b32 v6, 1, v5")
    n = 0
    for bb, xo in enumerate(xoffs):
        for q in range(4):
            g.e(f"buffer_load_dwordx4 v[{xb+16*bb+4*q}:{xb+3+16*bb+4*q}], v6, s[{srd_x}:{srd_x+3}], {xo} offen offset:{16*q}")
            n += 1
    g.e("v_lshlrev_b32 v7, 13, v5")
    g.e(f"s_lshl_b32 s6, {s_h}, 8")
    g.e("v_lshlrev_b32 v8, 4, v3")
    g.e("v_add3_u32 v7, v7, s6, v8")
    g.e("s_mov_b32 s6, 0")
    for i in range(32):
        g.e(f"buffer_load_dwordx4 v[{wb+4*i}:{wb+4*i+3}], v7, s[{srd_w}:{srd_w+3}], s6 offen{NTW_}")
        g.e("s_add_u32 s6, s6, 8192")
        n += 1
    return n

def proj_rows(g, abase, lds_x, lds_red, s_dst):
    ACC = 16
    for r in range(8): g.e(f"v_mov_b32 v{ACC+r}, 0")
    g.e("s_lshl_b32 s6, s5, 7")
    g.e(f"s_add_u32 s6, s6, {lds_x}")
    g.e("v_mov_b32 v10, s6")
    for q in range(8):
        g.e(f"ds_read_b128 v[{64+4*q}:{67+4*q}], v10 offset:{16*q}")
    g.e("s_waitcnt vmcnt(0) lgkmcnt(0)")
    gemv_agpr_f32x(g, abase, 64, ACC, 32)
    g.e("s_lshl_b32 s6, s5, 11")
    g.e(f"s_add_u32 s6, s6, {lds_red}")
    g.e("v_lshlrev_b32 v10, 5, v2")
    g.e("v_add_u32 v10, s6, v10")
    g.e(f"ds_write_b128 v10, v[{ACC}:{ACC+3}]")
    g.e(f"ds_write_b128 v10, v[{ACC+4}:{ACC+7}] offset:16")
    g.e("s_waitcnt lgkmcnt(0)")
    g.e("s_barrier")
    g.e("v_lshlrev_b32 v11, 3, v0")
    g.e(f"v_add_u32 v10, {lds_red}, v11")
    for w in range(4):
        g.e(f"ds_read_b64 v[{32+2*w}:{33+2*w}], v10 offset:{2048*w}")
    g.e("s_waitcnt lgkmcnt(0)")
    for w in range(1, 4):
        g.e(f"v_add_f32 v32, v32, v{32+2*w}")
        g.e(f"v_add_f32 v33, v33, v{33+2*w}")
    g.e(f"buffer_store_dwordx2 v[32:33], v11, s[64:67], {s_dst} offen")


DBG_QABS, DBG_PA0, DBG_H = 0, 64, 128
WIN = int(os.environ.get("WIN", "16"))
SLP = int(os.environ.get("SLP", "1"))
class LQ:
    def __init__(self, g): self.g = g; self.items = []; self.issued = 0
    def add(self, fn): self.items.append(fn); return len(self.items) - 1
    def issue(self, k=1):
        for _ in range(k):
            if self.issued < len(self.items):
                self.items[self.issued](); self.issued += 1
    def issue_to(self, n):
        while self.issued < min(n, len(self.items)): self.issue()
    def wait(self, idx):
        assert idx < self.issued, (idx, self.issued)
        self.g.e(f"s_waitcnt vmcnt({min(63, self.issued - idx - 1)})")

def poll(g, tag, soff, ioff, target, mask=None):
    g.e("s_cmp_lg_u32 s5, 0")
    g.e(f"s_cbranch_scc1 {tag}_OK")
    g.lab(f"{tag}_L")
    g.e(f"buffer_load_dword v11, off, s[72:75], {soff} offset:{ioff} sc1")
    g.e("s_waitcnt vmcnt(0)")
    g.e("v_readfirstlane_b32 s13, v11")
    if mask is not None:
        g.e("s_nop 0")
        g.e(f"s_and_b32 s13, s13, {mask}")
    g.e(f"s_cmp_ge_u32 s13, {target}")
    g.e(f"s_cbranch_scc1 {tag}_OK")
    g.e(f"s_sleep {SLP}")
    g.e(f"s_branch {tag}_L")
    g.lab(f"{tag}_OK")
    g.e("s_barrier")

def signal(g, tag, soff, ioff, val):
    g.e("s_waitcnt vmcnt(0)")
    g.e("s_barrier")
    g.e("s_cmp_lg_u32 s5, 0")
    g.e(f"s_cbranch_scc1 {tag}_S")
    g.e(f"v_mov_b32 v11, {val}")
    g.e("s_mov_b64 exec, 1")
    g.e(f"buffer_atomic_add v11, off, s[72:75], {soff} offset:{ioff} sc1")
    g.e("s_mov_b64 exec, -1")
    g.lab(f"{tag}_S")

def k1(g):
    g.lab("k1_kernel")
    g.e("s_cmp_ge_u32 s2, 256")
    g.e("s_cbranch_scc1 K1_END")
    load_kernargs(g)
    g.e("s_and_b32 s3, s2, 7")
    g.e("s_lshr_b32 s4, s2, 3")
    g.e("v_lshrrev_b32 v1, 6, v0")
    g.e("v_and_b32 v2, 63, v0")
    g.e("v_readfirstlane_b32 s5, v1")
    g.e(f"s_mov_b32 s45, {SCALE:#x}")
    g.e("s_mov_b32 s46, 0xffff0000")
    g.e(f"s_mov_b32 s47, {LOG2E:#x}")
    g.e("v_and_b32 v3, 15, v2")
    g.e("v_lshrrev_b32 v4, 4, v2")
    g.e("s_lshr_b32 s7, s4, 3")
    g.e("s_lshl_b32 s6, s3, 2")
    g.e("s_add_u32 s7, s7, s6")
    g.e("s_and_b32 s4, s4, 7")
    g.e("s_lshl_b32 s70, s7, 2")
    g.e("s_waitcnt lgkmcnt(0)")
    srd(g, 64, P_WS, WS_SIZE)
    srd(g, 72, P_DBG, 256)
    stamp(g, 0)
    g.e("s_cmp_ge_u32 s4, 4")
    g.e("s_cbranch_scc1 K1_A")
    k1_b(g)
    g.e("s_endpgm")
    g.lab("K1_A")
    k1_a(g)
    g.lab("K1_END")
    g.e("s_endpgm")

def sum_q(g, tag, mat, own_b, lds_off):
    g.e("s_lshl_b32 s12, s7, 13")
    g.e(f"s_add_u32 s12, s12, {WS_QP + mat*1024:#x}")
    if own_b:
        g.e("s_lshl_b32 s13, s8, 9")
        g.e("s_add_u32 s12, s12, s13")
        g.e("v_cmp_gt_u32 vcc, 128, v0")
        g.e("s_and_saveexec_b64 s[68:69], vcc")
        g.e(f"s_cbranch_execz SQ{tag}")
    g.e("v_lshlrev_b32 v10, 2, v0")
    g.e("s_add_u32 s13, s12, 4096")
    for k in range(4):
        g.e(f"buffer_load_dword v{224+k}, v10, s[64:67], {'s12' if k < 2 else 's13'} offen offset:{2048*(k%2)} sc1")
    g.e("s_waitcnt vmcnt(0)")
    g.e("v_add_f32 v224, v224, v225")
    g.e("v_add_f32 v226, v226, v227")
    g.e("v_add_f32 v224, v224, v226")
    g.e("v_cvt_pk_bf16_f32 v224, v224, v224")
    g.e("v_lshlrev_b32 v10, 1, v0")
    g.e(f"v_add_u32 v10, {lds_off}, v10")
    g.e("ds_write_b16 v10, v224")
    if own_b:
        g.lab(f"SQ{tag}")
        g.e("s_mov_b64 exec, s[68:69]")
    g.e("s_waitcnt lgkmcnt(0)")
    g.e("s_barrier")

def prep1(g):
    g.e("s_mov_b32 s71, s8")
    srd(g, 48, P_WQA, 4 << 20)
    srd(g, 52, P_WQB, 4 << 20)
    srd(g, 56, P_AX, 2048)
    srd(g, 60, P_BX, 2048)
    g.e("s_lshl_b32 s6, s71, 7")
    g.e("s_lshl_b32 s12, s5, 5")
    g.e("s_add_u32 s6, s6, s12")
    g.e("v_lshlrev_b32 v5, 3, v4")
    g.e("v_add_u32 v5, s6, v5")
    g.e("v_lshlrev_b32 v6, 1, v5")
    for mat, sx in enumerate((56, 60)):
        for bb in range(2):
            r = 16 + 8 * mat + 4 * bb
            g.e(f"buffer_load_dwordx4 v[{r}:{r+3}], v6, s[{sx}:{sx+3}], 0 offen offset:{1024*bb}")
    g.e("v_lshlrev_b32 v7, 13, v5")
    g.e("s_lshl_b32 s6, s7, 8")
    g.e("v_lshlrev_b32 v8, 4, v3")
    g.e("v_add3_u32 v7, v7, s6, v8")
    for mat, sw in enumerate((48, 52)):
        g.e("s_mov_b32 s6, 0")
        for i in range(8):
            r = 96 + 32 * mat + 4 * i
            g.e(f"buffer_load_dwordx4 v[{r}:{r+3}], v7, s[{sw}:{sw+3}], s6 offen{NTW_}")
            g.e("s_add_u32 s6, s6, 8192")
    AC = 48
    for r in range(32): g.e(f"v_mov_b32 v{AC+r}, 0")
    for mat in range(2):
        for i in range(8):
            g.e(f"s_waitcnt vmcnt({15 - (8*mat + i)})")
            for bb in range(2):
                xp = 16 + 8 * mat + 4 * bb + i // 2
                lo, hi = 80 + 2 * bb, 81 + 2 * bb
                if i % 2 == 0:
                    g.e(f"v_and_b32 v{lo}, 0xffff, v{xp}")
                    g.e(f"v_lshlrev_b32 v{hi}, 16, v{xp}")
                else:
                    g.e(f"v_lshrrev_b32 v{lo}, 16, v{xp}")
                    g.e(f"v_and_b32 v{hi}, s46, v{xp}")
            for bb in range(2):
                lo, hi = 80 + 2 * bb, 81 + 2 * bb
                for d in range(4):
                    w = 96 + 32 * mat + 4 * i + d
                    a = AC + 16 * mat + 8 * bb + 2 * d
                    g.e(f"v_dot2c_f32_bf16 v{a}, v{w}, v{lo}")
                    g.e(f"v_dot2c_f32_bf16 v{a+1}, v{w}, v{hi}")
    g.e("s_lshl_b32 s6, s5, 13")
    g.e("v_lshlrev_b32 v10, 11, v4")
    g.e("v_lshl_add_u32 v10, v3, 5, v10")
    g.e("v_add_u32 v10, s6, v10")
    for k in range(4):
        a = AC + 8 * k
        g.e(f"ds_write_b128 v10, v[{a}:{a+3}] offset:{512*k}")
        g.e(f"ds_write_b128 v10, v[{a+4}:{a+7}] offset:{512*k+16}")
    g.e("s_waitcnt lgkmcnt(0)")
    g.e("s_barrier")
    g.e("v_lshlrev_b32 v10, 3, v0")
    for p in range(16):
        g.e(f"ds_read_b64 v[{96+2*p}:{97+2*p}], v10 offset:{2048*p}")
    g.e("s_waitcnt lgkmcnt(0)")
    for p in range(1, 16):
        g.e(f"v_add_f32 v96, v96, v{96+2*p}")
        g.e(f"v_add_f32 v97, v97, v{97+2*p}")
    g.e("s_lshl_b32 s12, s7, 13")
    g.e("s_lshl_b32 s13, s71, 11")
    g.e("s_add_u32 s12, s12, s13")
    g.e(f"s_add_u32 s12, s12, {WS_QP:#x}")
    g.e("buffer_store_dwordx2 v[96:97], v10, s[64:67], s12 offen sc1")
    signal(g, "K1A_S0", "s70", DBG_H, 1)
    stamp(g, 2)

def wuk_loads(g):
    g.e("s_mov_b32 s71, s4")
    srd(g, 76, P_WUK, 4 << 20)
    g.e("s_lshl_b32 s12, s5, 5")
    g.e("s_lshl_b32 s6, s71, 7")
    g.e("s_add_u32 s6, s6, s12")
    g.e("v_add_u32 v9, s6, v3")
    g.e("v_lshlrev_b32 v9, 13, v9")
    g.e("s_lshl_b32 s6, s7, 8")
    g.e("v_lshlrev_b32 v10, 4, v4")
    g.e("v_add3_u32 v9, v9, s6, v10")
    g.e("s_mov_b32 s6, 0")
    for t in range(2):
        for j in range(4):
            g.e(f"buffer_load_dwordx4 v[{192+16*t+4*j}:{192+16*t+4*j+3}], v9, s[76:79], s6 offen offset:{64*j}{NTW_}")
        g.e("s_add_u32 s6, s6, 16*8192")

def prep2(g):
    poll(g, "K1A_P0", "s70", DBG_H, 4, mask=255)
    sum_q(g, "A", 0, False, LDS_QB)
    g.e("v_and_b32 v10, 1, v2")
    g.e("v_lshlrev_b32 v10, 8, v10")
    g.e("v_lshl_add_u32 v10, v4, 4, v10")
    g.e(f"v_add_u32 v10, {LDS_QB:#x}, v10")
    QF = 160
    for j in range(4):
        g.e(f"ds_read_b128 v[{QF+4*j}:{QF+4*j+3}], v10 offset:{64*j}")
    g.e("v_lshlrev_b32 v10, 15, v3")
    g.e("v_lshrrev_b32 v11, 1, v4")
    g.e("v_lshl_add_u32 v10, v11, 9, v10")
    g.e("v_and_b32 v11, 1, v4")
    g.e("v_lshl_add_u32 v10, v11, 3, v10")
    g.e("s_lshl_b32 s12, s7, 4")
    g.e("s_lshl_b32 s13, s5, 11")
    g.e("s_add_u32 s12, s12, s13")
    g.e("s_lshl_b32 s13, s71, 13")
    g.e("s_add_u32 s12, s12, s13")
    g.e("v_add_u32 v10, s12, v10")
    g.e("s_waitcnt lgkmcnt(0)")
    D = 176
    for t in range(2):
        for j in range(4):
            c = "0" if j == 0 else f"v[{D+4*t}:{D+4*t+3}]"
            g.e(f"v_mfma_f32_16x16x32_bf16 v[{D+4*t}:{D+4*t+3}], v[{192+16*t+4*j}:{192+16*t+4*j+3}], v[{QF+4*j}:{QF+4*j+3}], {c}")
    g.e("s_nop 7")
    for t in range(2):
        g.e(f"v_cvt_pk_bf16_f32 v{D+4*t}, v{D+4*t}, v{D+4*t+1}")
        g.e(f"v_cvt_pk_bf16_f32 v{D+4*t+1}, v{D+4*t+2}, v{D+4*t+3}")
    g.e("v_cmp_gt_u32 vcc, 2, v3")
    g.e("s_and_saveexec_b64 s[68:69], vcc")
    for t in range(2):
        g.e(f"buffer_store_dwordx2 v[{D+4*t}:{D+4*t+1}], v10, s[64:67], 0 offen offset:{WS_QABS+1024*t} sc1")
    g.e("s_mov_b64 exec, s[68:69]")
    signal(g, "K1A_S1", "0", DBG_QABS, 1)
    stamp(g, 8)


def k1_b(g):
    NTW = 16
    wuk_loads(g)
    g.e("s_lshr_b32 s8, s4, 1")
    g.e("s_and_b32 s9, s4, 1")
    g.e("s_lshl_b32 s10, s8, 5")
    g.e("s_add_u32 s10, s10, s7")
    g.e("s_lshl_b32 s11, s10, 21")
    g.e("s_lshl_b32 s12, s9, 18")
    g.e("s_add_u32 s11, s11, s12")
    g.e("s_add_u32 s11, s11, 6144*256")
    for d, p in ((52, P_K), (56, P_V)):
        g.e(f"s_add_u32 s{d}, s{p}, s11")
        g.e(f"s_addc_u32 s{d+1}, s{p+1}, 0")
        g.e(f"s_mov_b32 s{d+2}, {64*4096}")
        g.e(f"s_mov_b32 s{d+3}, 0x00020000")
    g.e("v_lshlrev_b32 v9, 4, v2")
    g.e("s_lshl_b32 s85, s5, 10")
    g.e("s_mov_b32 s86, s85")
    q = LQ(g)
    NU = 64
    VR = 32
    SC, NS, QF = 160, 64, 240
    def ld_k(i):
        g.e(f"buffer_load_dwordx4 a[{4*i}:{4*i+3}], v9, s[52:55], s85 offen{NT}")
        g.e("s_add_u32 s85, s85, 4096")
    iK = [q.add(lambda i=i: ld_k(i)) for i in range(NU)]
    def ld_v(i):
        r = 32 + 4 * (i % VR)
        g.e(f"buffer_load_dwordx4 v[{r}:{r+3}], v9, s[56:59], s86 offen{NT}")
        g.e("s_add_u32 s86, s86, 4096")
    iV = [q.add(lambda i=i: ld_v(i)) for i in range(NU)]
    KP = int(os.environ.get("KP", "32"))
    for k in range(NU):
        if k == KP:
            stamp(g, 1)
            prep2(g)
            stamp(g, 2)
        if k >= WIN and not (KP <= k < KP + WIN): q.wait(k - WIN)
        q.issue(1)
    sum_q(g, "B", 1, True, 8192)
    g.e("v_lshlrev_b32 v10, 4, v3")
    g.e(f"ds_read_b128 v[{QF}:{QF+3}], v10 offset:8192")
    g.e("s_waitcnt vmcnt(0)")
    q.issue(WIN)
    g.e("s_waitcnt lgkmcnt(0)")
    stamp(g, 3)
    T = 224
    for u0 in range(0, NU, 4):
        for k in range(4):
            for d in range(4):
                g.e(f"v_accvgpr_read_b32 v{T+4*k+d}, a{4*(u0+k)+d}")
        for k in range(4):
            g.e(f"v_dot2_f32_bf16 v{SC+u0+k}, v{T+4*k}, v{QF}, 0")
        for d in range(1, 4):
            for k in range(4):
                g.e(f"v_dot2c_f32_bf16 v{SC+u0+k}, v{T+4*k+d}, v{QF+d}")
        if u0 >= 4:
            for sh in (8, 4, 2, 1):
                for k in range(4):
                    r = SC + u0 - 4 + k
                    g.e(f"v_add_f32_dpp v{r}, v{r}, v{r} row_ror:{sh} row_mask:0xf bank_mask:0xf")
        q.issue_to(min(q.issued + 1, iV[VR - 1] + 1))
    g.e("s_nop 2")
    for sh in (8, 4, 2, 1):
        for k in range(4):
            r = SC + NU - 4 + k
            g.e(f"v_add_f32_dpp v{r}, v{r}, v{r} row_ror:{sh} row_mask:0xf bank_mask:0xf")
    q.issue_to(iV[VR - 1] + 1)
    stamp(g, 4)
    ACC = 16
    round_scale(g, [SC + k for k in range(NS)], 24)
    g.e(f"v_max3_f32 v24, v{SC}, v{SC+1}, v{SC+2}")
    for k in range(3, NS - 1, 2):
        g.e(f"v_max3_f32 v24, v24, v{SC+k}, v{SC+k+1}")
    g.e(f"v_max_f32 v24, v24, v{SC+NS-1}")
    for sw in ("v_permlane16_swap_b32", "v_permlane32_swap_b32"):
        g.e("v_mov_b32 v25, v24")
        g.e("s_nop 1")
        g.e(f"{sw} v24, v25")
        g.e("s_nop 1")
        g.e("v_max_f32 v24, v24, v25")
    g.e("v_mul_f32 v26, s47, v24")
    g.e("v_sub_f32 v26, 0, v26")
    g.e("v_mov_b32 v27, 0")
    for r in range(8): g.e(f"v_mov_b32 v{ACC+r}, 0")
    for k in range(NS):
        g.e(f"v_fma_f32 v{SC+k}, v{SC+k}, s47, v26")
        g.e(f"v_exp_f32 v{SC+k}, v{SC+k}")
    for i in range(NU):
        q.issue_to(iV[i] + 1)
        q.wait(iV[i])
        p = SC + i
        lo, hi = 28 + 2 * (i & 1), 29 + 2 * (i & 1)
        g.e(f"v_add_f32 v27, v27, v{p}")
        g.e(f"v_cvt_pk_bf16_f32 v{lo}, v{p}, 0")
        g.e(f"v_cvt_pk_bf16_f32 v{hi}, 0, v{p}")
        for d in range(4):
            w = 32 + 4 * (i % VR) + d
            g.e(f"v_dot2c_f32_bf16 v{ACC+2*d}, v{w}, v{lo}")
            g.e(f"v_dot2c_f32_bf16 v{ACC+2*d+1}, v{w}, v{hi}")
        if i + VR < NU: q.issue_to(iV[i + VR] + 1)
    stamp(g, 5)
    g.e("s_lshl_b32 s6, s5, 11")
    g.e("v_lshlrev_b32 v10, 9, v4")
    g.e("v_lshl_add_u32 v10, v3, 5, v10")
    g.e("v_add_u32 v10, s6, v10")
    g.e("s_nop 0")
    g.e(f"ds_write_b128 v10, v[{ACC}:{ACC+3}]")
    g.e(f"ds_write_b128 v10, v[{ACC+4}:{ACC+7}] offset:16")
    g.e("s_lshl_b32 s6, s5, 5")
    g.e("v_lshlrev_b32 v10, 3, v4")
    g.e("v_add_u32 v10, s6, v10")
    g.e("v_mov_b32 v25, v27")
    g.e("ds_write_b64 v10, v[24:25] offset:8704")
    g.e("s_waitcnt lgkmcnt(0)")
    g.e("s_barrier")
    g.e("v_cmp_gt_u32 vcc, 128, v0")
    g.e("s_and_saveexec_b64 s[68:69], vcc")
    g.e("s_cbranch_execz K1B_C1")
    g.e("v_mov_b32 v10, 0")
    for qq in range(8):
        g.e(f"ds_read_b128 v[{48+4*qq}:{51+4*qq}], v10 offset:{8704+16*qq}")
    g.e("v_lshlrev_b32 v10, 2, v0")
    for p in range(16):
        g.e(f"ds_read_b32 v{16+p}, v10 offset:{512*p}")
    g.e("s_waitcnt lgkmcnt(0)")
    g.e("v_max_f32 v40, v48, v56")
    g.e("v_max3_f32 v40, v40, v64, v72")
    for w in range(4):
        g.e(f"v_sub_f32 v{44+w}, v{48+8*w}, v40")
        g.e(f"v_mul_f32 v{44+w}, s47, v{44+w}")
        g.e(f"v_exp_f32 v{44+w}, v{44+w}")
    g.e("v_mov_b32 v41, 0")
    g.e("v_mov_b32 v42, 0")
    for w in range(4):
        g.e(f"v_add_f32 v{16+4*w}, v{16+4*w}, v{17+4*w}")
        g.e(f"v_add_f32 v{18+4*w}, v{18+4*w}, v{19+4*w}")
        g.e(f"v_add_f32 v{16+4*w}, v{16+4*w}, v{18+4*w}")
        g.e(f"v_fmac_f32 v42, v{16+4*w}, v{44+w}")
        g.e(f"v_add_f32 v{49+8*w}, v{49+8*w}, v{51+8*w}")
        g.e(f"v_add_f32 v{53+8*w}, v{53+8*w}, v{55+8*w}")
        g.e(f"v_add_f32 v{49+8*w}, v{49+8*w}, v{53+8*w}")
        g.e(f"v_fmac_f32 v41, v{49+8*w}, v{44+w}")
    g.e("s_lshl_b32 s6, s10, 1")
    g.e("s_add_u32 s6, s6, s9")
    g.e("s_lshl_b32 s6, s6, 10")
    g.e(f"s_add_u32 s6, s6, {WS_BP:#x}")
    g.e("buffer_store_dword v42, v10, s[64:67], s6 offen sc1")
    g.e("v_cmp_eq_u32 vcc, 0, v0")
    g.e("s_and_b64 exec, exec, vcc")
    g.e("buffer_store_dwordx2 v[40:41], v10, s[64:67], s6 offen offset:512 sc1")
    g.lab("K1B_C1")
    g.e("s_mov_b64 exec, s[68:69]")
    signal(g, "K1B_SG", "s70", DBG_H, 256)
    stamp(g, 6)

LDS_CK = 0
LDS_QP = 0x20000
LDS_MX = 0x22000
LDS_LS = 0x22400
LDS_QB = 0x22800
LDS_TOTAL = 0x22C00
def fsw(r): return ((r & 3) << 2) | ((r >> 2) & 3)

def gemv16(g, abase, xb, acc):
    for i in range(16):
        t = 32 + 12 * (i & 1)
        for d in range(4):
            g.e(f"v_accvgpr_read_b32 v{t+d}, a{abase+4*i+d}")
        for d in range(4):
            g.e(f"v_lshlrev_b32 v{t+4+d}, 16, v{t+d}")
            g.e(f"v_and_b32 v{t+8+d}, s46, v{t+d}")
        for d in range(4):
            g.e(f"v_fmac_f32 v{acc+2*d}, v{t+4+d}, v{xb+i}")
            g.e(f"v_fmac_f32 v{acc+2*d+1}, v{t+8+d}, v{xb+i}")

def proj16(g, vbase, lds_x, lds_red, s_dst):
    g.e("s_lshl_b32 s6, s5, 6")
    g.e(f"s_add_u32 s6, s6, {lds_x}")
    g.e("v_mov_b32 v10, s6")
    for qq in range(4):
        g.e(f"ds_read_b128 v[{64+4*qq}:{67+4*qq}], v10 offset:{16*qq}")
    for r in range(8): g.e(f"v_mov_b32 v{16+r}, 0")
    g.e("s_waitcnt lgkmcnt(0)")
    for i in range(16):
        g.e(f"v_lshrrev_b32 v{80+i}, 16, v{64+i}")
    for i in range(16):
        for d in range(4):
            g.e(f"v_dot2c_f32_bf16 v{16+2*d}, v{vbase+4*i+d}, v{80+i}")
            g.e(f"v_dot2c_f32_bf16 v{17+2*d}, v{vbase+4*i+d}, v{64+i}")
    g.e("s_lshl_b32 s6, s5, 11")
    g.e("v_lshlrev_b32 v10, 5, v2")
    g.e("v_add_u32 v10, s6, v10")
    g.e("s_nop 0")
    g.e(f"ds_write_b128 v10, v[16:19] offset:{lds_red}")
    g.e(f"ds_write_b128 v10, v[20:23] offset:{lds_red+16}")
    g.e("s_waitcnt lgkmcnt(0)")
    g.e("s_barrier")
    g.e("v_lshlrev_b32 v11, 3, v0")
    for w in range(4):
        g.e(f"ds_read_b64 v[{32+2*w}:{33+2*w}], v11 offset:{lds_red+2048*w}")
    g.e("s_waitcnt lgkmcnt(0)")
    for w in range(1, 4):
        g.e(f"v_add_f32 v32, v32, v{32+2*w}")
        g.e(f"v_add_f32 v33, v33, v{33+2*w}")
    g.e(f"buffer_store_dwordx2 v[32:33], v11, s[64:67], {s_dst} offen")

def k1_a(g):
    g.c("A path: s7=h s8=k(0..3) s9=a s10=b(attn) ; F roles: s14=fb (k>>1), s15=dhalf (k&1)")
    g.e("s_sub_u32 s8, s4, 4")
    g.e("s_lshl_b32 s9, s7, 2")
    g.e("s_add_u32 s9, s9, s8")
    g.e("s_lshr_b32 s10, s9, 6")
    g.e("s_lshr_b32 s14, s8, 1")
    g.e("s_and_b32 s15, s8, 1")
    prep1(g)
    g.e("s_lshl_b32 s12, s9, 17")
    srd(g, 56, P_CKV, 128 << 10, "s12")
    srd(g, 76, P_WUV, 4 << 20)
    srd(g, 80, P_WOA, 4 << 20)
    srd(g, 48, P_WOB, 4 << 20)
    g.e("v_lshlrev_b32 v12, 4, v2")
    g.e("v_and_b32 v5, 31, v2")
    g.e("v_lshrrev_b32 v6, 5, v2")
    g.e("s_lshl_b32 s12, s5, 15")
    for r in range(32):
        g.e(f"v_xor_b32 v10, {fsw(r & 15) << 4}, v12")
        g.e(f"s_add_u32 s13, s12, {r*1024}")
        g.e("s_mov_b32 m0, s13")
        g.e("s_nop 0")
        g.e(f"buffer_load_dwordx4 v10, s[56:59], s13 offen{NT} lds")
    g.e("s_lshl_b32 s6, s5, 7")
    g.e("v_lshrrev_b32 v13, 3, v2")
    g.e("v_lshlrev_b32 v13, 4, v13")
    g.e("v_add_u32 v13, s6, v13")
    g.e("v_lshlrev_b32 v13, 13, v13")
    g.e("s_lshl_b32 s6, s7, 8")
    g.e("s_lshl_b32 s13, s15, 7")
    g.e("s_add_u32 s6, s6, s13")
    g.e("v_and_b32 v10, 7, v2")
    g.e("v_lshlrev_b32 v10, 4, v10")
    g.e("v_add3_u32 v1, v13, s6, v10")
    g.e("s_mov_b32 s85, 0")
    g.e("s_lshl_b32 s84, s7, 17")
    g.e("s_lshl_b32 s13, s15, 16")
    g.e("s_add_u32 s84, s84, s13")
    g.e("s_lshl_b32 s13, s5, 14")
    g.e("s_add_u32 s84, s84, s13")
    g.e("s_mov_b32 s86, s84")
    WUVL = os.environ.get("WUVL", "0") == "1"
    if not WUVL:
        for i in range(16):
            g.e(f"s_waitcnt vmcnt({WIN-1})")
            g.e(f"buffer_load_dwordx4 a[{4*i}:{4*i+3}], v1, s[76:79], s85 offen{NTW_}")
            g.e("s_add_u32 s85, s85, 8192")
    g.e("s_waitcnt vmcnt(0)")
    stamp(g, 1)
    poll(g, "K1A_P1", "0", DBG_QABS, 128)
    stamp(g, 4)
    QB = 128
    g.e("s_lshl_b32 s12, s10, 15")
    for j in range(32):
        if j % 4 == 0 and j: g.e("s_add_u32 s12, s12, 4096")
        g.e(f"buffer_load_dwordx4 v[{QB+4*j}:{QB+4*j+3}], v12, s[64:67], s12 offen offset:{WS_QABS+1024*(j%4)} sc1")
    g.e("v_and_b32 v7, 3, v5")
    g.e("v_lshlrev_b32 v7, 2, v7")
    g.e("v_bfe_u32 v8, v5, 2, 2")
    g.e("v_or_b32 v7, v7, v8")
    g.e("s_lshl_b32 s12, s5, 15")
    g.e("v_lshlrev_b32 v8, 10, v5")
    g.e("v_add_u32 v8, s12, v8")
    QA = 16
    for jj in range(8):
        g.e(f"v_or_b32 v9, {2*jj}, v6")
        g.e("v_xor_b32 v9, v9, v7")
        g.e(f"v_lshl_add_u32 v{QA+jj}, v9, 4, v8")
    TA, TB = 24, 96
    g.e("v_bfe_u32 v9, v2, 2, 2")
    g.e("v_bfe_u32 v10, v2, 4, 1")
    g.e("v_bfe_u32 v11, v2, 1, 1")
    g.e("v_lshl_add_u32 v10, v10, 1, v11")
    g.e("v_and_b32 v11, 1, v2")
    g.e("v_lshlrev_b32 v11, 3, v11")
    g.e("s_lshl_b32 s12, s5, 8")
    g.e("v_add_u32 v11, s12, v11")
    g.e("v_lshl_add_u32 v13, v6, 2, v9")
    g.e("v_lshl_add_u32 v11, v13, 10, v11")
    for s in range(2):
        g.e(f"v_or_b32 v13, {2*s}, v6")
        g.e("v_lshl_add_u32 v13, v9, 2, v13")
        for ct in range(4):
            g.e(f"v_or_b32 v14, {4*ct}, v10")
            g.e("v_xor_b32 v14, v14, v13")
            g.e(f"v_lshl_add_u32 v{TA+4*s+ct}, v14, 4, v11")
            g.e(f"v_add_u32 v{TB+4*s+ct}, 0x10000, v{TA+4*s+ct}")
    OA, SCR, PF = 192, 104, 120
    MRUN, LRUN = 7, 8
    stamp(g, 5)
    for j in range(32):
        a_, jj = j // 8, j % 8
        B = 32 + 4 * (j % 16)
        g.e(f"ds_read_b128 v[{B}:{B+3}], v{QA+jj} offset:{a_*256}")
        if j >= 8:
            jm = j - 8
            Bm = 32 + 4 * (jm % 16)
            g.e(f"s_waitcnt vmcnt({31-jm}) lgkmcnt(8)")
            c = "0" if jm == 0 else f"v[{SCR}:{SCR+15}]"
            g.e(f"v_mfma_f32_32x32x16_bf16 v[{SCR}:{SCR+15}], v[{Bm}:{Bm+3}], v[{QB+4*jm}:{QB+4*jm+3}], {c}")
    for jm in range(24, 32):
        Bm = 32 + 4 * (jm % 16)
        g.e(f"s_waitcnt vmcnt({31-jm}) lgkmcnt({31-jm})")
        g.e(f"v_mfma_f32_32x32x16_bf16 v[{SCR}:{SCR+15}], v[{Bm}:{Bm+3}], v[{QB+4*jm}:{QB+4*jm+3}], v[{SCR}:{SCR+15}]")
    g.e("s_nop 7")
    g.e("s_nop 3")
    round_scale(g, [SCR + k for k in range(16)], 32)
    g.e(f"v_max3_f32 v32, v{SCR}, v{SCR+1}, v{SCR+2}")
    for k in range(3, 15, 2):
        g.e(f"v_max3_f32 v32, v32, v{SCR+k}, v{SCR+k+1}")
    g.e(f"v_max_f32 v32, v32, v{SCR+15}")
    g.e("v_mov_b32 v33, v32")
    g.e("s_nop 1")
    g.e("v_permlane32_swap_b32 v32, v33")
    g.e("s_nop 1")
    g.e("v_max_f32 v32, v32, v33")
    g.e("s_lshl_b32 s12, s5, 7")
    g.e("v_lshlrev_b32 v10, 2, v5")
    g.e(f"v_add_u32 v11, {LDS_MX:#x}, v10")
    g.e("v_add_u32 v10, s12, v11")
    g.e("ds_write_b32 v10, v32")
    g.e("s_waitcnt lgkmcnt(0)")
    g.e("s_barrier")
    for w in range(4):
        g.e(f"ds_read_b32 v{32+w}, v11 offset:{128*w}")
    g.e("s_waitcnt lgkmcnt(0)")
    g.e("v_max3_f32 v32, v32, v33, v34")
    g.e(f"v_max_f32 v{MRUN}, v32, v35")
    g.e(f"v_mul_f32 v34, s47, v{MRUN}")
    g.e("v_sub_f32 v34, 0, v34")
    for k in range(16):
        g.e(f"v_fma_f32 v{SCR+k}, v{SCR+k}, s47, v34")
        g.e(f"v_exp_f32 v{SCR+k}, v{SCR+k}")
    g.e("s_nop 0")
    g.e(f"v_add_f32 v{LRUN}, v{SCR}, v{SCR+1}")
    for k in range(2, 16):
        g.e(f"v_add_f32 v{LRUN}, v{LRUN}, v{SCR+k}")
    for k in range(8):
        g.e(f"v_cvt_pk_bf16_f32 v{PF+k}, v{SCR+2*k}, v{SCR+2*k+1}")
    g.e("s_lshl_b32 s12, s5, 11")
    g.e(f"s_add_u32 s12, s12, {LDS_QP:#x}")
    g.e("v_add_u32 v10, s12, v12")
    g.e(f"ds_write_b128 v10, v[{PF}:{PF+3}]")
    g.e(f"ds_write_b128 v10, v[{PF+4}:{PF+7}] offset:1024")
    g.e("s_lshl_b32 s12, s5, 8")
    g.e(f"s_add_u32 s12, s12, {LDS_LS:#x}")
    g.e("v_lshl_add_u32 v10, v2, 2, s12")
    g.e(f"ds_write_b32 v10, v{LRUN}")
    g.e("s_waitcnt lgkmcnt(0)")
    g.e("s_barrier")
    stamp(g, 6)
    g.e(f"v_add_u32 v10, {LDS_QP:#x}, v12")
    def pv_reads(kg):
        t, f = kg >> 1, kg & 1
        PA = 32 + 4 * (kg & 1)
        BB = 40 + 16 * (kg & 1)
        g.e(f"ds_read_b128 v[{PA}:{PA+3}], v10 offset:{kg*1024}")
        for ct in range(4):
            for s in range(2):
                off = (32 * t + 16 * f + 8 * s) * 1024
                base = TA if off < 65536 else TB
                g.e(f"ds_read_b64_tr_b16 v[{BB+4*ct+2*s}:{BB+4*ct+2*s+1}], v{base+4*s+ct} offset:{off % 65536}")
    pv_reads(0)
    for kg in range(8):
        PA = 32 + 4 * (kg & 1)
        BB = 40 + 16 * (kg & 1)
        if kg < 7:
            pv_reads(kg + 1)
            g.e("s_waitcnt lgkmcnt(9)")
        else:
            g.e("s_waitcnt lgkmcnt(0)")
        for ct in range(4):
            c = "0" if kg == 0 else f"a[{OA+16*ct}:{OA+16*ct+15}]"
            g.e(f"v_mfma_f32_32x32x16_bf16 a[{OA+16*ct}:{OA+16*ct+15}], v[{PA}:{PA+3}], v[{BB+4*ct}:{BB+4*ct+3}], {c}")
    stamp(g, 7)
    g.e("s_lshl_b32 s12, s9, 15")
    g.e(f"s_add_u32 s12, s12, {WS_AO:#x}")
    g.e("s_lshl_b32 s13, s5, 8")
    g.e("s_add_u32 s12, s12, s13")
    g.e("v_lshlrev_b32 v10, 12, v6")
    g.e("v_lshl_add_u32 v10, v5, 2, v10")
    g.e("s_nop 7")
    g.e("s_nop 3")
    for r in range(16):
        head = (r & 3) + 8 * (r >> 2)
        g.e(f"s_add_u32 s13, s12, {head*1024}")
        for p in range(2):
            t = 32 + 4 * (r & 3) + 2 * p
            g.e(f"v_accvgpr_read_b32 v{t}, a{OA+32*p+r}")
            g.e(f"v_accvgpr_read_b32 v{t+1}, a{OA+32*p+16+r}")
            g.e(f"v_cvt_pk_bf16_f32 v{t}, v{t}, v{t+1}")
            g.e(f"buffer_store_dword v{t}, v10, s[64:67], s13 offen offset:{128*p} sc1")
    g.e("s_cmp_lg_u32 s5, 0")
    g.e("s_cbranch_scc1 K1A_ML1")
    g.e("v_cmp_gt_u32 vcc, 32, v2")
    g.e("s_and_saveexec_b64 s[68:69], vcc")
    g.e("v_lshlrev_b32 v10, 2, v2")
    g.e(f"v_add_u32 v10, {LDS_LS:#x}, v10")
    for qq in range(8):
        g.e(f"ds_read_b32 v{64+qq}, v10 offset:{128*qq}")
    g.e("s_waitcnt lgkmcnt(0)")
    for qq in range(1, 8):
        g.e(f"v_add_f32 v64, v64, v{64+qq}")
    g.e(f"v_mov_b32 v65, v64")
    g.e(f"v_mov_b32 v64, v{MRUN}")
    g.e("s_lshl_b32 s12, s9, 8")
    g.e(f"s_add_u32 s12, s12, {WS_AML:#x}")
    g.e("v_lshlrev_b32 v10, 3, v2")
    g.e("buffer_store_dwordx2 v[64:65], v10, s[64:67], s12 offen sc1")
    g.e("s_mov_b64 exec, s[68:69]")
    g.lab("K1A_ML1")
    g.e("s_lshl_b32 s71, s10, 2")
    signal(g, "K1A_S2", "s71", DBG_PA0, 1)
    stamp(g, 8)
    if WUVL:
        for i in range(16):
            g.e(f"buffer_load_dwordx4 a[{4*i}:{4*i+3}], v1, s[76:79], s85 offen{NTW_}")
            g.e("s_add_u32 s85, s85, 8192")
    for i in range(16):
        g.e(f"buffer_load_dwordx4 v[{128+4*i}:{128+4*i+3}], v12, s[80:83], s84 offen{NTW_}")
        g.e("s_add_u32 s84, s84, 1024")
    for i in range(16):
        g.e(f"buffer_load_dwordx4 v[{192+4*i}:{192+4*i+3}], v12, s[48:51], s86 offen{NTW_}")
        g.e("s_add_u32 s86, s86, 1024")
    g.e("s_lshl_b32 s71, s14, 2")
    poll(g, "K1A_P2", "s71", DBG_PA0, 64)
    stamp(g, 9)
    g.e("v_lshlrev_b32 v10, 8, v2")
    g.e("s_lshl_b32 s6, s7, 3")
    g.e("s_lshl_b32 s13, s14, 14")
    g.e("s_add_u32 s6, s6, s13")
    g.e(f"s_add_u32 s6, s6, {WS_AML:#x}")
    g.e("buffer_load_dwordx2 v[16:17], v10, s[64:67], s6 offen sc1")
    g.e("s_lshl_b32 s6, s7, 10")
    g.e("s_lshl_b32 s13, s5, 19")
    g.e("s_add_u32 s6, s6, s13")
    g.e("s_lshl_b32 s13, s14, 21")
    g.e("s_add_u32 s6, s6, s13")
    g.e(f"s_add_u32 s6, s6, {WS_AO:#x}")
    for s_ in range(16):
        g.e(f"buffer_load_dwordx4 v[{64+4*s_}:{67+4*s_}], v12, s[64:67], s6 offen sc1")
        g.e("s_add_u32 s6, s6, 32768")
    g.e("s_waitcnt vmcnt(16)")
    def allred(reg, op):
        for sh in (1, 2, 4, 8):
            g.e("s_nop 1")
            g.e(f"{op}_dpp v{reg}, v{reg}, v{reg} row_ror:{sh} row_mask:0xf bank_mask:0xf")
        for sw in ("v_permlane16_swap_b32", "v_permlane32_swap_b32"):
            g.e(f"v_mov_b32 v19, v{reg}")
            g.e("s_nop 1")
            g.e(f"{sw} v{reg}, v19")
            g.e("s_nop 1")
            g.e(f"{op} v{reg}, v{reg}, v19")
    g.e("v_mov_b32 v18, v16")
    allred(18, "v_max_f32")
    g.e("v_sub_f32 v16, v16, v18")
    g.e("v_mul_f32 v16, s47, v16")
    g.e("v_exp_f32 v16, v16")
    g.e("s_nop 0")
    g.e("v_mul_f32 v17, v17, v16")
    allred(17, "v_add_f32")
    g.e("v_rcp_f32 v17, v17")
    g.e("s_nop 0")
    g.e("v_mul_f32 v16, v16, v17")
    for r in range(8): g.e(f"v_mov_b32 v{24+r}, 0")
    g.e("s_lshl_b32 s6, s5, 4")
    for s_ in range(16):
        g.e(f"s_add_u32 s13, s6, {s_}")
        g.e("v_readlane_b32 s12, v16, s13")
        g.e(f"s_waitcnt vmcnt({15 - s_})")
        for d in range(4):
            g.e(f"v_lshlrev_b32 v{32+d}, 16, v{64+4*s_+d}")
            g.e(f"v_and_b32 v{36+d}, s46, v{64+4*s_+d}")
        for d in range(4):
            g.e(f"v_fmac_f32 v{24+d}, s12, v{32+d}")
            g.e(f"v_fmac_f32 v{28+d}, s12, v{36+d}")
    g.e("v_lshrrev_b32 v10, 3, v2")
    g.e("v_and_b32 v11, 7, v2")
    g.e("v_lshlrev_b32 v11, 4, v11")
    g.e("v_lshl_add_u32 v10, v10, 8, v11")
    g.e("s_lshl_b32 s6, s5, 11")
    g.e("v_add_u32 v10, s6, v10")
    g.e("ds_write_b128 v10, v[24:27] offset:40960")
    g.e("ds_write_b128 v10, v[28:31] offset:41088")
    g.e("s_waitcnt lgkmcnt(0)")
    g.e("s_barrier")
    g.e("v_lshlrev_b32 v11, 3, v0")
    for w in range(4):
        g.e(f"ds_read_b64 v[{32+2*w}:{33+2*w}], v11 offset:{40960+2048*w}")
    g.e("s_waitcnt lgkmcnt(0)")
    for w in range(1, 4):
        g.e(f"v_add_f32 v32, v32, v{32+2*w}")
        g.e(f"v_add_f32 v33, v33, v{33+2*w}")
    g.e("ds_write_b64 v11, v[32:33]")
    g.e("s_waitcnt lgkmcnt(0)")
    g.e("s_barrier")
    g.e("s_lshl_b32 s6, s5, 9")
    g.e("v_lshrrev_b32 v10, 3, v2")
    g.e("v_lshlrev_b32 v10, 6, v10")
    g.e("v_add_u32 v10, s6, v10")
    for qq in range(4):
        g.e(f"ds_read_b128 v[{64+4*qq}:{67+4*qq}], v10 offset:{16*qq}")
    for r in range(8): g.e(f"v_mov_b32 v{16+r}, 0")
    g.e("s_waitcnt lgkmcnt(0)")
    gemv16(g, 0, 64, 16)
    g.e("s_lshl_b32 s6, s5, 11")
    g.e("v_lshlrev_b32 v10, 5, v2")
    g.e("v_add_u32 v10, s6, v10")
    g.e("ds_write_b128 v10, v[16:19] offset:4096")
    g.e("ds_write_b128 v10, v[20:23] offset:4112")
    g.e("s_waitcnt lgkmcnt(0)")
    g.e("s_barrier")
    g.e("s_cmp_lg_u32 s5, 0")
    g.e("s_cbranch_scc1 K1A_F2")
    g.e("v_lshlrev_b32 v10, 2, v2")
    for p in range(32):
        g.e(f"ds_read_b32 v{32+p}, v10 offset:{4096+256*p}")
    g.e("s_waitcnt lgkmcnt(0)")
    for p in range(1, 32):
        g.e(f"v_add_f32 v32, v32, v{32+p}")
    g.e("v_cvt_pk_bf16_f32 v32, v32, v32")
    g.e("v_and_b32 v32, s46, v32")
    g.e("ds_write_b32 v10, v32 offset:20480")
    g.lab("K1A_F2")
    g.e("s_waitcnt lgkmcnt(0)")
    g.e("s_barrier")
    g.e("s_lshl_b32 s87, s7, 1")
    g.e("s_add_u32 s87, s87, s15")
    g.e("s_lshl_b32 s87, s87, 11")
    g.e("s_lshl_b32 s13, s14, 17")
    g.e("s_add_u32 s87, s87, s13")
    g.e(f"s_add_u32 s87, s87, {WS_Y:#x}")
    proj16(g, 128, 20480, 24576, "s87")
    stamp(g, 10)
    poll(g, "K1A_P3", "s70", DBG_H, 1024)
    g.e("s_cmp_lg_u32 s5, 0")
    g.e("s_cbranch_scc1 K1A_F3")
    g.e("s_lshl_b32 s6, s14, 5")
    g.e("s_add_u32 s6, s6, s7")
    g.e("s_lshl_b32 s6, s6, 11")
    g.e(f"s_add_u32 s6, s6, {WS_BP:#x}")
    g.e("s_lshl_b32 s13, s15, 8")
    g.e("v_lshlrev_b32 v10, 2, v2")
    g.e("v_add_u32 v11, s13, v10")
    for sp in range(2):
        g.e(f"buffer_load_dword v{32+sp}, v11, s[64:67], s6 offen offset:{1024*sp} sc1")
        g.e(f"buffer_load_dwordx2 v[{36+2*sp}:{37+2*sp}], off, s[64:67], s6 offset:{1024*sp+512} sc1")
    g.e("s_waitcnt vmcnt(0)")
    g.e("v_max_f32 v40, v36, v38")
    for sp in range(2):
        g.e(f"v_sub_f32 v{36+2*sp}, v{36+2*sp}, v40")
        g.e(f"v_mul_f32 v{36+2*sp}, s47, v{36+2*sp}")
        g.e(f"v_exp_f32 v{36+2*sp}, v{36+2*sp}")
    g.e("s_nop 0")
    g.e("v_mul_f32 v41, v36, v37")
    g.e("v_fmac_f32 v41, v38, v39")
    g.e("v_mul_f32 v42, v36, v32")
    g.e("v_fmac_f32 v42, v38, v33")
    g.e("v_rcp_f32 v41, v41")
    g.e("s_nop 0")
    g.e("v_mul_f32 v42, v42, v41")
    g.e("v_cvt_pk_bf16_f32 v42, v42, v42")
    g.e("v_and_b32 v42, s46, v42")
    g.e("ds_write_b32 v10, v42 offset:20992")
    g.lab("K1A_F3")
    g.e("s_waitcnt vmcnt(0) lgkmcnt(0)")
    g.e("s_barrier")
    g.e("s_add_u32 s87, s87, 0x40000")
    proj16(g, 192, 20992, 32768, "s87")
    stamp(g, 11)

def k2(g):
    g.lab("k2_kernel")
    g.e("s_cmp_ge_u32 s2, 32")
    g.e("s_cbranch_scc1 K2_END")
    load_kernargs(g)
    g.e("v_lshrrev_b32 v1, 6, v0")
    g.e("v_and_b32 v2, 63, v0")
    g.e("v_readfirstlane_b32 s5, v1")
    g.e("s_lshr_b32 s8, s2, 4")
    g.e("s_bfe_u32 s9, s2, 0x10003")
    g.e("s_and_b32 s10, s2, 7")
    g.e("s_lshl_b32 s6, s9, 1")
    g.e("s_add_u32 s6, s6, s8")
    g.e("s_lshl_b32 s6, s6, 17")
    g.e("s_lshl_b32 s11, s5, 15")
    g.e("s_add_u32 s6, s6, s11")
    g.e("s_lshl_b32 s12, s10, 8")
    g.e("s_add_u32 s6, s6, s12")
    g.e(f"s_add_u32 s6, s6, {WS_Y:#x}")
    g.e("v_lshlrev_b32 v10, 2, v2")
    g.e("s_waitcnt lgkmcnt(0)")
    srd(g, 64, P_WS, WS_SIZE)
    srd(g, 48, P_OUT, 4096)
    for h in range(16):
        g.e(f"buffer_load_dword v{32+h}, v10, s[64:67], s6 offen")
        g.e("s_add_u32 s6, s6, 2048")
    g.e("s_waitcnt vmcnt(0)")
    for h in range(1, 16):
        g.e(f"v_add_f32 v32, v32, v{32+h}")
    g.e("v_lshlrev_b32 v11, 2, v0")
    g.e("ds_write_b32 v11, v32")
    g.e("s_waitcnt lgkmcnt(0)")
    g.e("s_barrier")
    g.e("s_cmp_lg_u32 s5, 0")
    g.e("s_cbranch_scc1 K2_END")
    for w in range(4):
        g.e(f"ds_read_b32 v{20+w}, v10 offset:{256*w}")
    g.e("s_waitcnt lgkmcnt(0)")
    g.e("v_add_f32 v20, v20, v21")
    g.e("v_add_f32 v22, v22, v23")
    g.e("v_add_f32 v20, v20, v22")
    g.e("v_cvt_pk_bf16_f32 v20, v20, v20")
    g.e("s_lshl_b32 s6, s2, 7")
    g.e("v_lshlrev_b32 v11, 1, v2")
    g.e("buffer_store_short v20, v11, s[48:51], s6 offen")
    g.lab("K2_END")
    g.e("s_endpgm")


def k0(g):
    g.lab("k0_kernel")
    g.e("s_cmp_ge_u32 s2, 64")
    g.e("s_cbranch_scc1 K0_END")
    load_kernargs(g)
    g.e("s_waitcnt lgkmcnt(0)")
    srd(g, 48, P_K, 128 << 20)
    srd(g, 52, P_V, 128 << 20)
    srd(g, 56, P_CKV, 16 << 20)
    g.e("v_and_b32 v1, 63, v0")
    g.e("v_lshlrev_b32 v2, 21, v1")
    g.e("v_add_u32 v2, 0x180000, v2")
    g.e("v_lshrrev_b32 v3, 6, v0")
    g.e("v_lshl_add_u32 v2, v3, 17, v2")
    g.e("buffer_load_dword v8, v2, s[48:51], 0 offen")
    g.e("buffer_load_dword v9, v2, s[52:55], 0 offen")
    g.e("v_lshlrev_b32 v4, 16, v0")
    g.e("buffer_load_dword v10, v4, s[56:59], 0 offen")
    g.e("v_lshlrev_b32 v5, 14, v0")
    for i, p in enumerate((P_WQA, P_WUK, P_WUV, P_WOA, P_WQB, P_WOB)):
        srd(g, 60, p, 4 << 20)
        g.e(f"buffer_load_dword v{11+i}, v5, s[60:63], 0 offen")
    g.e("s_waitcnt vmcnt(0)")
    g.lab("K0_END")
    g.e("s_endpgm")

def desc(name, vg, acc):
    return f""".amdhsa_kernel {name}
  .amdhsa_next_free_vgpr {vg}
  .amdhsa_next_free_sgpr 102
  .amdhsa_accum_offset {acc}
  .amdhsa_group_segment_fixed_size 0
  .amdhsa_kernarg_size 112
  .amdhsa_user_sgpr_count 2
  .amdhsa_user_sgpr_kernarg_segment_ptr 1
  .amdhsa_system_sgpr_workgroup_id_x 1
.end_amdhsa_kernel
"""

def main():
    out = HEADER
    K0 = os.environ.get("K0", "0") == "1"
    if K0: out += "; @launch kernel=k0_kernel grid=(64,1,1) block=(256,1,1) lds=0\n"
    out += f"; @launch kernel=k1_kernel grid=(256,1,1) block=(256,1,1) lds={LDS_TOTAL}\n"
    out += "; @launch kernel=k2_kernel grid=(32,1,1) block=(256,1,1) lds=1024\n"
    out += '.amdgcn_target "amdgcn-amd-amdhsa--gfx950"\n.text\n'
    for nm, fn in (("k1_kernel", k1), ("k2_kernel", k2)) + ((("k0_kernel", k0),) if K0 else ()):
        g = G(); fn(g)
        out += f".globl {nm}\n.p2align 8\n.type {nm},@function\n" + g.text()
    out += '.section .rodata,"a"\n.p2align 6\n'
    out += desc("k1_kernel", 512, 256) + ".p2align 6\n" + desc("k2_kernel", 128, 128) + ((".p2align 6\n" + desc("k0_kernel", 64, 64)) if K0 else "")
    dst = sys.argv[1] if len(sys.argv) > 1 else f"cdna_kernels/{NAME}.s"
    open(dst, "w").write(out)
    print("wrote", dst, len(out))
main()
```

```python
import sys, os
NAME = "concat_heads__compressed_kv_cla__sliding_block_cached__decode"
HEADER = open(f"cdna_kernels/{NAME}.s.ref").read().split("; Override launch geometry")[0]

LOG2E = 0x3FB8AA3B
SCALE = 0x3DB504F3
NEGBIG = 0xF149F2CA

WS_QABS = 0x0
WS_AML = 0x10000
WS_BP = 0x20000
WS_Y = 0x80000
WS_AO = 0x100000
WS_QP = 0x600000
WS_SIZE = 0x800000
STAMPS = os.environ.get("STAMPS", "0") == "1"
NT = " nt"
NTW_ = " nt" if os.environ.get("NTW", "1") == "1" else ""
WS_TS = 0x700000

class G:
    def __init__(self): self.L = []
    def e(self, s): self.L.append("    " + s)
    def lab(self, s): self.L.append(s + ":")
    def c(self, s): self.L.append("    ; " + s)
    def text(self): return "\n".join(self.L) + "\n"

_sid = [0]
def stamp(g, idx):
    if not STAMPS: return
    _sid[0] += 1
    L = f"ST_{_sid[0]}"
    g.e("s_cmp_lg_u32 s5, 0")
    g.e(f"s_cbranch_scc1 {L}")
    g.e("s_memrealtime s[90:91]")
    g.e("s_waitcnt lgkmcnt(0)")
    g.e("v_mov_b32 v14, s90")
    g.e("v_mov_b32 v15, s91")
    g.e("s_lshl_b32 s92, s2, 7")
    g.e(f"s_add_u32 s92, s92, {WS_TS + 8*idx}")
    g.e("buffer_store_dwordx2 v[14:15], off, s[64:67], s92")
    g.lab(L)

def load_kernargs(g):
    g.e("s_load_dwordx16 s[16:31], s[0:1], 0")
    g.e("s_load_dwordx8 s[32:39], s[0:1], 64")
    g.e("s_load_dwordx4 s[40:43], s[0:1], 96")
P_AX, P_CKV, P_WQA, P_WUK, P_WUV, P_WOA, P_BX, P_K, P_V, P_WQB, P_WOB, P_OUT, P_DBG, P_WS = [16 + 2 * i for i in range(14)]

def srd(g, d, p, size, off_lo=None):
    if off_lo is None:
        g.e(f"s_mov_b32 s{d}, s{p}")
        g.e(f"s_mov_b32 s{d+1}, s{p+1}")
    else:
        g.e(f"s_add_u32 s{d}, s{p}, {off_lo}")
        g.e(f"s_addc_u32 s{d+1}, s{p+1}, 0")
    g.e(f"s_mov_b32 s{d+2}, {size}")
    g.e(f"s_mov_b32 s{d+3}, 0x00020000")

def round_scale(g, regs, tmp):
    for i in range(0, len(regs), 2):
        a, b = regs[i], regs[i + 1]
        g.e(f"v_cvt_pk_bf16_f32 v{tmp}, v{a}, v{b}")
        g.e(f"v_lshlrev_b32 v{a}, 16, v{tmp}")
        g.e(f"v_and_b32 v{b}, s46, v{tmp}")
        g.e(f"v_mul_f32 v{a}, s45, v{a}")
        g.e(f"v_mul_f32 v{b}, s45, v{b}")
        g.e(f"v_cvt_pk_bf16_f32 v{tmp}, v{a}, v{b}")
        g.e(f"v_lshlrev_b32 v{a}, 16, v{tmp}")
        g.e(f"v_and_b32 v{b}, s46, v{tmp}")

def gemv_rows_bf16x(g, nb, wbase, xbase, acc, t0, wait_fn):
    for i in range(32):
        wait_fn(i)
        for bb in range(nb):
            xp = xbase + 16 * bb + i // 2
            lo, hi = t0 + 2 * bb, t0 + 2 * bb + 1
            if i % 2 == 0:
                g.e(f"v_and_b32 v{lo}, 0xffff, v{xp}")
                g.e(f"v_lshlrev_b32 v{hi}, 16, v{xp}")
            else:
                g.e(f"v_lshrrev_b32 v{lo}, 16, v{xp}")
                g.e(f"v_and_b32 v{hi}, s46, v{xp}")
        for bb in range(nb):
            lo, hi = t0 + 2 * bb, t0 + 2 * bb + 1
            for d in range(4):
                w = wbase + 4 * i + d
                g.e(f"v_dot2c_f32_bf16 v{acc[bb] + 2*d}, v{w}, v{lo}")
                g.e(f"v_dot2c_f32_bf16 v{acc[bb] + 2*d + 1}, v{w}, v{hi}")

def gemv_agpr_f32x(g, abase, xb, acc, t0):
    for i in range(32):
        t = t0 + 12 * (i & 1)
        for d in range(4):
            g.e(f"v_accvgpr_read_b32 v{t+d}, a{abase+4*i+d}")
        for d in range(4):
            g.e(f"v_lshlrev_b32 v{t+4+d}, 16, v{t+d}")
            g.e(f"v_and_b32 v{t+8+d}, s46, v{t+d}")
        for d in range(4):
            g.e(f"v_fmac_f32 v{acc+2*d}, v{t+4+d}, v{xb+i}")
            g.e(f"v_fmac_f32 v{acc+2*d+1}, v{t+8+d}, v{xb+i}")

def q_phase_loads(g, srd_x, srd_w, xoffs, s_h, wb, xb):
    g.e("s_lshl_b32 s6, s5, 7")
    g.e("v_lshlrev_b32 v5, 5, v4")
    g.e("v_add_u32 v5, s6, v5")
    g.e("v_lshlrev_b32 v6, 1, v5")
    n = 0
    for bb, xo in enumerate(xoffs):
        for q in range(4):
            g.e(f"buffer_load_dwordx4 v[{xb+16*bb+4*q}:{xb+3+16*bb+4*q}], v6, s[{srd_x}:{srd_x+3}], {xo} offen offset:{16*q}")
            n += 1
    g.e("v_lshlrev_b32 v7, 13, v5")
    g.e(f"s_lshl_b32 s6, {s_h}, 8")
    g.e("v_lshlrev_b32 v8, 4, v3")
    g.e("v_add3_u32 v7, v7, s6, v8")
    g.e("s_mov_b32 s6, 0")
    for i in range(32):
        g.e(f"buffer_load_dwordx4 v[{wb+4*i}:{wb+4*i+3}], v7, s[{srd_w}:{srd_w+3}], s6 offen{NTW_}")
        g.e("s_add_u32 s6, s6, 8192")
        n += 1
    return n

def proj_rows(g, abase, lds_x, lds_red, s_dst):
    ACC = 16
    for r in range(8): g.e(f"v_mov_b32 v{ACC+r}, 0")
    g.e("s_lshl_b32 s6, s5, 7")
    g.e(f"s_add_u32 s6, s6, {lds_x}")
    g.e("v_mov_b32 v10, s6")
    for q in range(8):
        g.e(f"ds_read_b128 v[{64+4*q}:{67+4*q}], v10 offset:{16*q}")
    g.e("s_waitcnt vmcnt(0) lgkmcnt(0)")
    gemv_agpr_f32x(g, abase, 64, ACC, 32)
    g.e("s_lshl_b32 s6, s5, 11")
    g.e(f"s_add_u32 s6, s6, {lds_red}")
    g.e("v_lshlrev_b32 v10, 5, v2")
    g.e("v_add_u32 v10, s6, v10")
    g.e(f"ds_write_b128 v10, v[{ACC}:{ACC+3}]")
    g.e(f"ds_write_b128 v10, v[{ACC+4}:{ACC+7}] offset:16")
    g.e("s_waitcnt lgkmcnt(0)")
    g.e("s_barrier")
    g.e("v_lshlrev_b32 v11, 3, v0")
    g.e(f"v_add_u32 v10, {lds_red}, v11")
    for w in range(4):
        g.e(f"ds_read_b64 v[{32+2*w}:{33+2*w}], v10 offset:{2048*w}")
    g.e("s_waitcnt lgkmcnt(0)")
    for w in range(1, 4):
        g.e(f"v_add_f32 v32, v32, v{32+2*w}")
        g.e(f"v_add_f32 v33, v33, v{33+2*w}")
    g.e(f"buffer_store_dwordx2 v[32:33], v11, s[64:67], {s_dst} offen")


DBG_QABS, DBG_PA0, DBG_H = 0, 64, 128
WIN = int(os.environ.get("WIN", "20"))
SLP = int(os.environ.get("SLP", "1"))
class LQ:
    def __init__(self, g): self.g = g; self.items = []; self.issued = 0
    def add(self, fn): self.items.append(fn); return len(self.items) - 1
    def issue(self, k=1):
        for _ in range(k):
            if self.issued < len(self.items):
                self.items[self.issued](); self.issued += 1
    def issue_to(self, n):
        while self.issued < min(n, len(self.items)): self.issue()
    def wait(self, idx):
        assert idx < self.issued, (idx, self.issued)
        self.g.e(f"s_waitcnt vmcnt({min(63, self.issued - idx - 1)})")

def poll(g, tag, soff, ioff, target, mask=None):
    g.e("s_cmp_lg_u32 s5, 0")
    g.e(f"s_cbranch_scc1 {tag}_OK")
    g.lab(f"{tag}_L")
    g.e(f"buffer_load_dword v11, off, s[72:75], {soff} offset:{ioff} sc1")
    g.e("s_waitcnt vmcnt(0)")
    g.e("v_readfirstlane_b32 s13, v11")
    if mask is not None:
        g.e("s_nop 0")
        g.e(f"s_and_b32 s13, s13, {mask}")
    g.e(f"s_cmp_ge_u32 s13, {target}")
    g.e(f"s_cbranch_scc1 {tag}_OK")
    g.e(f"s_sleep {SLP}")
    g.e(f"s_branch {tag}_L")
    g.lab(f"{tag}_OK")
    g.e("s_barrier")

def signal(g, tag, soff, ioff, val):
    g.e("s_waitcnt vmcnt(0)")
    g.e("s_barrier")
    g.e("s_cmp_lg_u32 s5, 0")
    g.e(f"s_cbranch_scc1 {tag}_S")
    g.e(f"v_mov_b32 v11, {val}")
    g.e("s_mov_b64 exec, 1")
    g.e(f"buffer_atomic_add v11, off, s[72:75], {soff} offset:{ioff} sc1")
    g.e("s_mov_b64 exec, -1")
    g.lab(f"{tag}_S")

def k1(g):
    g.lab("k1_kernel")
    g.e("s_cmp_ge_u32 s2, 256")
    g.e("s_cbranch_scc1 K1_END")
    load_kernargs(g)
    g.e("s_and_b32 s3, s2, 7")
    g.e("s_lshr_b32 s4, s2, 3")
    g.e("v_lshrrev_b32 v1, 6, v0")
    g.e("v_and_b32 v2, 63, v0")
    g.e("v_readfirstlane_b32 s5, v1")
    g.e(f"s_mov_b32 s45, {SCALE:#x}")
    g.e("s_mov_b32 s46, 0xffff0000")
    g.e(f"s_mov_b32 s47, {LOG2E:#x}")
    g.e("v_and_b32 v3, 15, v2")
    g.e("v_lshrrev_b32 v4, 4, v2")
    g.e("s_lshr_b32 s7, s4, 3")
    g.e("s_lshl_b32 s6, s3, 2")
    g.e("s_add_u32 s7, s7, s6")
    g.e("s_and_b32 s4, s4, 7")
    g.e("s_lshl_b32 s70, s7, 2")
    g.e("s_waitcnt lgkmcnt(0)")
    srd(g, 64, P_WS, WS_SIZE)
    srd(g, 72, P_DBG, 256)
    stamp(g, 0)
    g.e("s_cmp_ge_u32 s4, 4")
    g.e("s_cbranch_scc1 K1_A")
    k1_b(g)
    g.e("s_endpgm")
    g.lab("K1_A")
    k1_a(g)
    g.lab("K1_END")
    g.e("s_endpgm")

def sum_q(g, tag, mat, own_b, lds_off):
    g.e("s_lshl_b32 s12, s7, 13")
    g.e(f"s_add_u32 s12, s12, {WS_QP + mat*1024:#x}")
    if own_b:
        g.e("s_lshl_b32 s13, s8, 9")
        g.e("s_add_u32 s12, s12, s13")
        g.e("v_cmp_gt_u32 vcc, 128, v0")
        g.e("s_and_saveexec_b64 s[68:69], vcc")
        g.e(f"s_cbranch_execz SQ{tag}")
    g.e("v_lshlrev_b32 v10, 2, v0")
    g.e("s_add_u32 s13, s12, 4096")
    for k in range(4):
        g.e(f"buffer_load_dword v{224+k}, v10, s[64:67], {'s12' if k < 2 else 's13'} offen offset:{2048*(k%2)} sc1")
    g.e("s_waitcnt vmcnt(0)")
    g.e("v_add_f32 v224, v224, v225")
    g.e("v_add_f32 v226, v226, v227")
    g.e("v_add_f32 v224, v224, v226")
    g.e("v_cvt_pk_bf16_f32 v224, v224, v224")
    g.e("v_lshlrev_b32 v10, 1, v0")
    g.e(f"v_add_u32 v10, {lds_off}, v10")
    g.e("ds_write_b16 v10, v224")
    if own_b:
        g.lab(f"SQ{tag}")
        g.e("s_mov_b64 exec, s[68:69]")
    g.e("s_waitcnt lgkmcnt(0)")
    g.e("s_barrier")

def prep1(g):
    g.e("s_mov_b32 s71, s8")
    srd(g, 48, P_WQA, 4 << 20)
    srd(g, 52, P_WQB, 4 << 20)
    srd(g, 56, P_AX, 2048)
    srd(g, 60, P_BX, 2048)
    g.e("s_lshl_b32 s6, s71, 7")
    g.e("s_lshl_b32 s12, s5, 5")
    g.e("s_add_u32 s6, s6, s12")
    g.e("v_lshlrev_b32 v5, 3, v4")
    g.e("v_add_u32 v5, s6, v5")
    g.e("v_lshlrev_b32 v6, 1, v5")
    for mat, sx in enumerate((56, 60)):
        for bb in range(2):
            r = 16 + 8 * mat + 4 * bb
            g.e(f"buffer_load_dwordx4 v[{r}:{r+3}], v6, s[{sx}:{sx+3}], 0 offen offset:{1024*bb}")
    g.e("v_lshlrev_b32 v7, 13, v5")
    g.e("s_lshl_b32 s6, s7, 8")
    g.e("v_lshlrev_b32 v8, 4, v3")
    g.e("v_add3_u32 v7, v7, s6, v8")
    for mat, sw in enumerate((48, 52)):
        g.e("s_mov_b32 s6, 0")
        for i in range(8):
            r = 96 + 32 * mat + 4 * i
            g.e(f"buffer_load_dwordx4 v[{r}:{r+3}], v7, s[{sw}:{sw+3}], s6 offen{NTW_}")
            g.e("s_add_u32 s6, s6, 8192")
    AC = 48
    for r in range(32): g.e(f"v_mov_b32 v{AC+r}, 0")
    for mat in range(2):
        for i in range(8):
            g.e(f"s_waitcnt vmcnt({15 - (8*mat + i)})")
            for bb in range(2):
                xp = 16 + 8 * mat + 4 * bb + i // 2
                lo, hi = 80 + 2 * bb, 81 + 2 * bb
                if i % 2 == 0:
                    g.e(f"v_and_b32 v{lo}, 0xffff, v{xp}")
                    g.e(f"v_lshlrev_b32 v{hi}, 16, v{xp}")
                else:
                    g.e(f"v_lshrrev_b32 v{lo}, 16, v{xp}")
                    g.e(f"v_and_b32 v{hi}, s46, v{xp}")
            for bb in range(2):
                lo, hi = 80 + 2 * bb, 81 + 2 * bb
                for d in range(4):
                    w = 96 + 32 * mat + 4 * i + d
                    a = AC + 16 * mat + 8 * bb + 2 * d
                    g.e(f"v_dot2c_f32_bf16 v{a}, v{w}, v{lo}")
                    g.e(f"v_dot2c_f32_bf16 v{a+1}, v{w}, v{hi}")
    g.e("s_lshl_b32 s6, s5, 13")
    g.e("v_lshlrev_b32 v10, 11, v4")
    g.e("v_lshl_add_u32 v10, v3, 5, v10")
    g.e("v_add_u32 v10, s6, v10")
    for k in range(4):
        a = AC + 8 * k
        g.e(f"ds_write_b128 v10, v[{a}:{a+3}] offset:{512*k}")
        g.e(f"ds_write_b128 v10, v[{a+4}:{a+7}] offset:{512*k+16}")
    g.e("s_waitcnt lgkmcnt(0)")
    g.e("s_barrier")
    g.e("v_lshlrev_b32 v10, 3, v0")
    for p in range(16):
        g.e(f"ds_read_b64 v[{96+2*p}:{97+2*p}], v10 offset:{2048*p}")
    g.e("s_waitcnt lgkmcnt(0)")
    for p in range(1, 16):
        g.e(f"v_add_f32 v96, v96, v{96+2*p}")
        g.e(f"v_add_f32 v97, v97, v{97+2*p}")
    g.e("s_lshl_b32 s12, s7, 13")
    g.e("s_lshl_b32 s13, s71, 11")
    g.e("s_add_u32 s12, s12, s13")
    g.e(f"s_add_u32 s12, s12, {WS_QP:#x}")
    g.e("buffer_store_dwordx2 v[96:97], v10, s[64:67], s12 offen sc1")
    signal(g, "K1A_S0", "s70", DBG_H, 1)
    stamp(g, 2)

def wuk_loads(g):
    g.e("s_mov_b32 s71, s4")
    srd(g, 76, P_WUK, 4 << 20)
    g.e("s_lshl_b32 s12, s5, 5")
    g.e("s_lshl_b32 s6, s71, 7")
    g.e("s_add_u32 s6, s6, s12")
    g.e("v_add_u32 v9, s6, v3")
    g.e("v_lshlrev_b32 v9, 13, v9")
    g.e("s_lshl_b32 s6, s7, 8")
    g.e("v_lshlrev_b32 v10, 4, v4")
    g.e("v_add3_u32 v9, v9, s6, v10")
    g.e("s_mov_b32 s6, 0")
    for t in range(2):
        for j in range(4):
            g.e(f"buffer_load_dwordx4 v[{192+16*t+4*j}:{192+16*t+4*j+3}], v9, s[76:79], s6 offen offset:{64*j}{NTW_}")
        g.e("s_add_u32 s6, s6, 16*8192")

def prep2(g):
    poll(g, "K1A_P0", "s70", DBG_H, 4, mask=255)
    sum_q(g, "A", 0, False, LDS_QB)
    g.e("v_and_b32 v10, 1, v2")
    g.e("v_lshlrev_b32 v10, 8, v10")
    g.e("v_lshl_add_u32 v10, v4, 4, v10")
    g.e(f"v_add_u32 v10, {LDS_QB:#x}, v10")
    QF = 160
    for j in range(4):
        g.e(f"ds_read_b128 v[{QF+4*j}:{QF+4*j+3}], v10 offset:{64*j}")
    g.e("v_lshlrev_b32 v10, 15, v3")
    g.e("v_lshrrev_b32 v11, 1, v4")
    g.e("v_lshl_add_u32 v10, v11, 9, v10")
    g.e("v_and_b32 v11, 1, v4")
    g.e("v_lshl_add_u32 v10, v11, 3, v10")
    g.e("s_lshl_b32 s12, s7, 4")
    g.e("s_lshl_b32 s13, s5, 11")
    g.e("s_add_u32 s12, s12, s13")
    g.e("s_lshl_b32 s13, s71, 13")
    g.e("s_add_u32 s12, s12, s13")
    g.e("v_add_u32 v10, s12, v10")
    g.e("s_waitcnt lgkmcnt(0)")
    D = 176
    for t in range(2):
        for j in range(4):
            c = "0" if j == 0 else f"v[{D+4*t}:{D+4*t+3}]"
            g.e(f"v_mfma_f32_16x16x32_bf16 v[{D+4*t}:{D+4*t+3}], v[{192+16*t+4*j}:{192+16*t+4*j+3}], v[{QF+4*j}:{QF+4*j+3}], {c}")
    g.e("s_nop 7")
    for t in range(2):
        g.e(f"v_cvt_pk_bf16_f32 v{D+4*t}, v{D+4*t}, v{D+4*t+1}")
        g.e(f"v_cvt_pk_bf16_f32 v{D+4*t+1}, v{D+4*t+2}, v{D+4*t+3}")
    g.e("v_cmp_gt_u32 vcc, 2, v3")
    g.e("s_and_saveexec_b64 s[68:69], vcc")
    for t in range(2):
        g.e(f"buffer_store_dwordx2 v[{D+4*t}:{D+4*t+1}], v10, s[64:67], 0 offen offset:{WS_QABS+1024*t} sc1")
    g.e("s_mov_b64 exec, s[68:69]")
    signal(g, "K1A_S1", "0", DBG_QABS, 1)
    stamp(g, 8)


def k1_b(g):
    NTW = 16
    wuk_loads(g)
    g.e("s_lshr_b32 s8, s4, 1")
    g.e("s_and_b32 s9, s4, 1")
    g.e("s_lshl_b32 s10, s8, 5")
    g.e("s_add_u32 s10, s10, s7")
    g.e("s_lshl_b32 s11, s10, 21")
    g.e("s_lshl_b32 s12, s9, 18")
    g.e("s_add_u32 s11, s11, s12")
    g.e("s_add_u32 s11, s11, 6144*256")
    for d, p in ((52, P_K), (56, P_V)):
        g.e(f"s_add_u32 s{d}, s{p}, s11")
        g.e(f"s_addc_u32 s{d+1}, s{p+1}, 0")
        g.e(f"s_mov_b32 s{d+2}, {64*4096}")
        g.e(f"s_mov_b32 s{d+3}, 0x00020000")
    g.e("v_lshlrev_b32 v9, 4, v2")
    g.e("s_lshl_b32 s85, s5, 10")
    g.e("s_mov_b32 s86, s85")
    q = LQ(g)
    NU = 64
    VR = 32
    SC, NS, QF = 160, 64, 240
    def ld_k(i):
        g.e(f"buffer_load_dwordx4 a[{4*i}:{4*i+3}], v9, s[52:55], s85 offen{NT}")
        g.e("s_add_u32 s85, s85, 4096")
    iK = [q.add(lambda i=i: ld_k(i)) for i in range(NU)]
    def ld_v(i):
        r = 32 + 4 * (i % VR)
        g.e(f"buffer_load_dwordx4 v[{r}:{r+3}], v9, s[56:59], s86 offen{NT}")
        g.e("s_add_u32 s86, s86, 4096")
    iV = [q.add(lambda i=i: ld_v(i)) for i in range(NU)]
    KP = int(os.environ.get("KP", "36"))
    for k in range(NU):
        if k == KP:
            stamp(g, 1)
            prep2(g)
            stamp(g, 2)
        if k >= WIN and not (KP <= k < KP + WIN): q.wait(k - WIN)
        q.issue(1)
    sum_q(g, "B", 1, True, 8192)
    g.e("v_lshlrev_b32 v10, 4, v3")
    g.e(f"ds_read_b128 v[{QF}:{QF+3}], v10 offset:8192")
    g.e("s_waitcnt vmcnt(0)")
    q.issue(WIN)
    g.e("s_waitcnt lgkmcnt(0)")
    stamp(g, 3)
    T = 224
    for u0 in range(0, NU, 4):
        for k in range(4):
            for d in range(4):
                g.e(f"v_accvgpr_read_b32 v{T+4*k+d}, a{4*(u0+k)+d}")
        for k in range(4):
            g.e(f"v_dot2_f32_bf16 v{SC+u0+k}, v{T+4*k}, v{QF}, 0")
        for d in range(1, 4):
            for k in range(4):
                g.e(f"v_dot2c_f32_bf16 v{SC+u0+k}, v{T+4*k+d}, v{QF+d}")
        if u0 >= 4:
            for sh in (8, 4, 2, 1):
                for k in range(4):
                    r = SC + u0 - 4 + k
                    g.e(f"v_add_f32_dpp v{r}, v{r}, v{r} row_ror:{sh} row_mask:0xf bank_mask:0xf")
        q.issue_to(min(q.issued + 1, iV[VR - 1] + 1))
    g.e("s_nop 2")
    for sh in (8, 4, 2, 1):
        for k in range(4):
            r = SC + NU - 4 + k
            g.e(f"v_add_f32_dpp v{r}, v{r}, v{r} row_ror:{sh} row_mask:0xf bank_mask:0xf")
    q.issue_to(iV[VR - 1] + 1)
    stamp(g, 4)
    ACC = 16
    round_scale(g, [SC + k for k in range(NS)], 24)
    g.e(f"v_max3_f32 v24, v{SC}, v{SC+1}, v{SC+2}")
    for k in range(3, NS - 1, 2):
        g.e(f"v_max3_f32 v24, v24, v{SC+k}, v{SC+k+1}")
    g.e(f"v_max_f32 v24, v24, v{SC+NS-1}")
    for sw in ("v_permlane16_swap_b32", "v_permlane32_swap_b32"):
        g.e("v_mov_b32 v25, v24")
        g.e("s_nop 1")
        g.e(f"{sw} v24, v25")
        g.e("s_nop 1")
        g.e("v_max_f32 v24, v24, v25")
    g.e("v_mul_f32 v26, s47, v24")
    g.e("v_sub_f32 v26, 0, v26")
    g.e("v_mov_b32 v27, 0")
    for r in range(8): g.e(f"v_mov_b32 v{ACC+r}, 0")
    for k in range(NS):
        g.e(f"v_fma_f32 v{SC+k}, v{SC+k}, s47, v26")
        g.e(f"v_exp_f32 v{SC+k}, v{SC+k}")
    for i in range(NU):
        q.issue_to(iV[i] + 1)
        q.wait(iV[i])
        p = SC + i
        lo, hi = 28 + 2 * (i & 1), 29 + 2 * (i & 1)
        g.e(f"v_add_f32 v27, v27, v{p}")
        g.e(f"v_cvt_pk_bf16_f32 v{lo}, v{p}, 0")
        g.e(f"v_cvt_pk_bf16_f32 v{hi}, 0, v{p}")
        for d in range(4):
            w = 32 + 4 * (i % VR) + d
            g.e(f"v_dot2c_f32_bf16 v{ACC+2*d}, v{w}, v{lo}")
            g.e(f"v_dot2c_f32_bf16 v{ACC+2*d+1}, v{w}, v{hi}")
        if i + VR < NU: q.issue_to(iV[i + VR] + 1)
    stamp(g, 5)
    g.e("s_lshl_b32 s6, s5, 11")
    g.e("v_lshlrev_b32 v10, 9, v4")
    g.e("v_lshl_add_u32 v10, v3, 5, v10")
    g.e("v_add_u32 v10, s6, v10")
    g.e("s_nop 0")
    g.e(f"ds_write_b128 v10, v[{ACC}:{ACC+3}]")
    g.e(f"ds_write_b128 v10, v[{ACC+4}:{ACC+7}] offset:16")
    g.e("s_lshl_b32 s6, s5, 5")
    g.e("v_lshlrev_b32 v10, 3, v4")
    g.e("v_add_u32 v10, s6, v10")
    g.e("v_mov_b32 v25, v27")
    g.e("ds_write_b64 v10, v[24:25] offset:8704")
    g.e("s_waitcnt lgkmcnt(0)")
    g.e("s_barrier")
    g.e("v_cmp_gt_u32 vcc, 128, v0")
    g.e("s_and_saveexec_b64 s[68:69], vcc")
    g.e("s_cbranch_execz K1B_C1")
    g.e("v_mov_b32 v10, 0")
    for qq in range(8):
        g.e(f"ds_read_b128 v[{48+4*qq}:{51+4*qq}], v10 offset:{8704+16*qq}")
    g.e("v_lshlrev_b32 v10, 2, v0")
    for p in range(16):
        g.e(f"ds_read_b32 v{16+p}, v10 offset:{512*p}")
    g.e("s_waitcnt lgkmcnt(0)")
    g.e("v_max_f32 v40, v48, v56")
    g.e("v_max3_f32 v40, v40, v64, v72")
    for w in range(4):
        g.e(f"v_sub_f32 v{44+w}, v{48+8*w}, v40")
        g.e(f"v_mul_f32 v{44+w}, s47, v{44+w}")
        g.e(f"v_exp_f32 v{44+w}, v{44+w}")
    g.e("v_mov_b32 v41, 0")
    g.e("v_mov_b32 v42, 0")
    for w in range(4):
        g.e(f"v_add_f32 v{16+4*w}, v{16+4*w}, v{17+4*w}")
        g.e(f"v_add_f32 v{18+4*w}, v{18+4*w}, v{19+4*w}")
        g.e(f"v_add_f32 v{16+4*w}, v{16+4*w}, v{18+4*w}")
        g.e(f"v_fmac_f32 v42, v{16+4*w}, v{44+w}")
        g.e(f"v_add_f32 v{49+8*w}, v{49+8*w}, v{51+8*w}")
        g.e(f"v_add_f32 v{53+8*w}, v{53+8*w}, v{55+8*w}")
        g.e(f"v_add_f32 v{49+8*w}, v{49+8*w}, v{53+8*w}")
        g.e(f"v_fmac_f32 v41, v{49+8*w}, v{44+w}")
    g.e("s_lshl_b32 s6, s10, 1")
    g.e("s_add_u32 s6, s6, s9")
    g.e("s_lshl_b32 s6, s6, 10")
    g.e(f"s_add_u32 s6, s6, {WS_BP:#x}")
    g.e("buffer_store_dword v42, v10, s[64:67], s6 offen sc1")
    g.e("v_cmp_eq_u32 vcc, 0, v0")
    g.e("s_and_b64 exec, exec, vcc")
    g.e("buffer_store_dwordx2 v[40:41], v10, s[64:67], s6 offen offset:512 sc1")
    g.lab("K1B_C1")
    g.e("s_mov_b64 exec, s[68:69]")
    signal(g, "K1B_SG", "s70", DBG_H, 256)
    stamp(g, 6)

LDS_CK = 0
LDS_QP = 0x20000
LDS_MX = 0x22000
LDS_LS = 0x22400
LDS_QB = 0x22800
LDS_TOTAL = 0x22C00
def fsw(r): return ((r & 3) << 2) | ((r >> 2) & 3)

def gemv16(g, abase, xb, acc):
    for i in range(16):
        t = 32 + 12 * (i & 1)
        for d in range(4):
            g.e(f"v_accvgpr_read_b32 v{t+d}, a{abase+4*i+d}")
        for d in range(4):
            g.e(f"v_lshlrev_b32 v{t+4+d}, 16, v{t+d}")
            g.e(f"v_and_b32 v{t+8+d}, s46, v{t+d}")
        for d in range(4):
            g.e(f"v_fmac_f32 v{acc+2*d}, v{t+4+d}, v{xb+i}")
            g.e(f"v_fmac_f32 v{acc+2*d+1}, v{t+8+d}, v{xb+i}")

def proj16(g, vbase, lds_x, lds_red, s_dst):
    g.e("s_lshl_b32 s6, s5, 6")
    g.e(f"s_add_u32 s6, s6, {lds_x}")
    g.e("v_mov_b32 v10, s6")
    for qq in range(4):
        g.e(f"ds_read_b128 v[{64+4*qq}:{67+4*qq}], v10 offset:{16*qq}")
    for r in range(8): g.e(f"v_mov_b32 v{16+r}, 0")
    g.e("s_waitcnt lgkmcnt(0)")
    for i in range(16):
        g.e(f"v_lshrrev_b32 v{80+i}, 16, v{64+i}")
    for i in range(16):
        for d in range(4):
            g.e(f"v_dot2c_f32_bf16 v{16+2*d}, v{vbase+4*i+d}, v{80+i}")
            g.e(f"v_dot2c_f32_bf16 v{17+2*d}, v{vbase+4*i+d}, v{64+i}")
    g.e("s_lshl_b32 s6, s5, 11")
    g.e("v_lshlrev_b32 v10, 5, v2")
    g.e("v_add_u32 v10, s6, v10")
    g.e("s_nop 0")
    g.e(f"ds_write_b128 v10, v[16:19] offset:{lds_red}")
    g.e(f"ds_write_b128 v10, v[20:23] offset:{lds_red+16}")
    g.e("s_waitcnt lgkmcnt(0)")
    g.e("s_barrier")
    g.e("v_lshlrev_b32 v11, 3, v0")
    for w in range(4):
        g.e(f"ds_read_b64 v[{32+2*w}:{33+2*w}], v11 offset:{lds_red+2048*w}")
    g.e("s_waitcnt lgkmcnt(0)")
    for w in range(1, 4):
        g.e(f"v_add_f32 v32, v32, v{32+2*w}")
        g.e(f"v_add_f32 v33, v33, v{33+2*w}")
    g.e(f"buffer_store_dwordx2 v[32:33], v11, s[64:67], {s_dst} offen")

def k1_a(g):
    g.c("A path: s7=h s8=k(0..3) s9=a s10=b(attn) ; F roles: s14=fb (k>>1), s15=dhalf (k&1)")
    g.e("s_sub_u32 s8, s4, 4")
    g.e("s_lshl_b32 s9, s7, 2")
    g.e("s_add_u32 s9, s9, s8")
    g.e("s_lshr_b32 s10, s9, 6")
    g.e("s_lshr_b32 s14, s8, 1")
    g.e("s_and_b32 s15, s8, 1")
    prep1(g)
    g.e("s_lshl_b32 s12, s9, 17")
    srd(g, 56, P_CKV, 128 << 10, "s12")
    srd(g, 76, P_WUV, 4 << 20)
    srd(g, 80, P_WOA, 4 << 20)
    srd(g, 48, P_WOB, 4 << 20)
    g.e("v_lshlrev_b32 v12, 4, v2")
    g.e("v_and_b32 v5, 31, v2")
    g.e("v_lshrrev_b32 v6, 5, v2")
    g.e("s_lshl_b32 s12, s5, 15")
    for r in range(32):
        g.e(f"v_xor_b32 v10, {fsw(r & 15) << 4}, v12")
        g.e(f"s_add_u32 s13, s12, {r*1024}")
        g.e("s_mov_b32 m0, s13")
        g.e("s_nop 0")
        g.e(f"buffer_load_dwordx4 v10, s[56:59], s13 offen{NT} lds")
    g.e("s_lshl_b32 s6, s5, 7")
    g.e("v_lshrrev_b32 v13, 3, v2")
    g.e("v_lshlrev_b32 v13, 4, v13")
    g.e("v_add_u32 v13, s6, v13")
    g.e("v_lshlrev_b32 v13, 13, v13")
    g.e("s_lshl_b32 s6, s7, 8")
    g.e("s_lshl_b32 s13, s15, 7")
    g.e("s_add_u32 s6, s6, s13")
    g.e("v_and_b32 v10, 7, v2")
    g.e("v_lshlrev_b32 v10, 4, v10")
    g.e("v_add3_u32 v1, v13, s6, v10")
    g.e("s_mov_b32 s85, 0")
    g.e("s_lshl_b32 s84, s7, 17")
    g.e("s_lshl_b32 s13, s15, 16")
    g.e("s_add_u32 s84, s84, s13")
    g.e("s_lshl_b32 s13, s5, 14")
    g.e("s_add_u32 s84, s84, s13")
    g.e("s_mov_b32 s86, s84")
    WUVL = os.environ.get("WUVL", "0") == "1"
    if not WUVL:
        for i in range(16):
            g.e(f"s_waitcnt vmcnt({WIN-1})")
            g.e(f"buffer_load_dwordx4 a[{4*i}:{4*i+3}], v1, s[76:79], s85 offen{NTW_}")
            g.e("s_add_u32 s85, s85, 8192")
    g.e("s_waitcnt vmcnt(0)")
    stamp(g, 1)
    poll(g, "K1A_P1", "0", DBG_QABS, 128)
    stamp(g, 4)
    QB = 128
    g.e("s_lshl_b32 s12, s10, 15")
    for j in range(32):
        if j % 4 == 0 and j: g.e("s_add_u32 s12, s12, 4096")
        g.e(f"buffer_load_dwordx4 v[{QB+4*j}:{QB+4*j+3}], v12, s[64:67], s12 offen offset:{WS_QABS+1024*(j%4)} sc1")
    g.e("v_and_b32 v7, 3, v5")
    g.e("v_lshlrev_b32 v7, 2, v7")
    g.e("v_bfe_u32 v8, v5, 2, 2")
    g.e("v_or_b32 v7, v7, v8")
    g.e("s_lshl_b32 s12, s5, 15")
    g.e("v_lshlrev_b32 v8, 10, v5")
    g.e("v_add_u32 v8, s12, v8")
    QA = 16
    for jj in range(8):
        g.e(f"v_or_b32 v9, {2*jj}, v6")
        g.e("v_xor_b32 v9, v9, v7")
        g.e(f"v_lshl_add_u32 v{QA+jj}, v9, 4, v8")
    TA, TB = 24, 96
    g.e("v_bfe_u32 v9, v2, 2, 2")
    g.e("v_bfe_u32 v10, v2, 4, 1")
    g.e("v_bfe_u32 v11, v2, 1, 1")
    g.e("v_lshl_add_u32 v10, v10, 1, v11")
    g.e("v_and_b32 v11, 1, v2")
    g.e("v_lshlrev_b32 v11, 3, v11")
    g.e("s_lshl_b32 s12, s5, 8")
    g.e("v_add_u32 v11, s12, v11")
    g.e("v_lshl_add_u32 v13, v6, 2, v9")
    g.e("v_lshl_add_u32 v11, v13, 10, v11")
    for s in range(2):
        g.e(f"v_or_b32 v13, {2*s}, v6")
        g.e("v_lshl_add_u32 v13, v9, 2, v13")
        for ct in range(4):
            g.e(f"v_or_b32 v14, {4*ct}, v10")
            g.e("v_xor_b32 v14, v14, v13")
            g.e(f"v_lshl_add_u32 v{TA+4*s+ct}, v14, 4, v11")
            g.e(f"v_add_u32 v{TB+4*s+ct}, 0x10000, v{TA+4*s+ct}")
    OA, SCR, PF = 192, 104, 120
    MRUN, LRUN = 7, 8
    stamp(g, 5)
    for j in range(32):
        a_, jj = j // 8, j % 8
        B = 32 + 4 * (j % 16)
        g.e(f"ds_read_b128 v[{B}:{B+3}], v{QA+jj} offset:{a_*256}")
        if j >= 8:
            jm = j - 8
            Bm = 32 + 4 * (jm % 16)
            g.e(f"s_waitcnt vmcnt({31-jm}) lgkmcnt(8)")
            c = "0" if jm == 0 else f"v[{SCR}:{SCR+15}]"
            g.e(f"v_mfma_f32_32x32x16_bf16 v[{SCR}:{SCR+15}], v[{Bm}:{Bm+3}], v[{QB+4*jm}:{QB+4*jm+3}], {c}")
    for jm in range(24, 32):
        Bm = 32 + 4 * (jm % 16)
        g.e(f"s_waitcnt vmcnt({31-jm}) lgkmcnt({31-jm})")
        g.e(f"v_mfma_f32_32x32x16_bf16 v[{SCR}:{SCR+15}], v[{Bm}:{Bm+3}], v[{QB+4*jm}:{QB+4*jm+3}], v[{SCR}:{SCR+15}]")
    g.e("s_nop 7")
    g.e("s_nop 3")
    round_scale(g, [SCR + k for k in range(16)], 32)
    g.e(f"v_max3_f32 v32, v{SCR}, v{SCR+1}, v{SCR+2}")
    for k in range(3, 15, 2):
        g.e(f"v_max3_f32 v32, v32, v{SCR+k}, v{SCR+k+1}")
    g.e(f"v_max_f32 v32, v32, v{SCR+15}")
    g.e("v_mov_b32 v33, v32")
    g.e("s_nop 1")
    g.e("v_permlane32_swap_b32 v32, v33")
    g.e("s_nop 1")
    g.e("v_max_f32 v32, v32, v33")
    g.e("s_lshl_b32 s12, s5, 7")
    g.e("v_lshlrev_b32 v10, 2, v5")
    g.e(f"v_add_u32 v11, {LDS_MX:#x}, v10")
    g.e("v_add_u32 v10, s12, v11")
    g.e("ds_write_b32 v10, v32")
    g.e("s_waitcnt lgkmcnt(0)")
    g.e("s_barrier")
    for w in range(4):
        g.e(f"ds_read_b32 v{32+w}, v11 offset:{128*w}")
    g.e("s_waitcnt lgkmcnt(0)")
    g.e("v_max3_f32 v32, v32, v33, v34")
    g.e(f"v_max_f32 v{MRUN}, v32, v35")
    g.e(f"v_mul_f32 v34, s47, v{MRUN}")
    g.e("v_sub_f32 v34, 0, v34")
    for k in range(16):
        g.e(f"v_fma_f32 v{SCR+k}, v{SCR+k}, s47, v34")
        g.e(f"v_exp_f32 v{SCR+k}, v{SCR+k}")
    g.e("s_nop 0")
    g.e(f"v_add_f32 v{LRUN}, v{SCR}, v{SCR+1}")
    for k in range(2, 16):
        g.e(f"v_add_f32 v{LRUN}, v{LRUN}, v{SCR+k}")
    for k in range(8):
        g.e(f"v_cvt_pk_bf16_f32 v{PF+k}, v{SCR+2*k}, v{SCR+2*k+1}")
    g.e("s_lshl_b32 s12, s5, 11")
    g.e(f"s_add_u32 s12, s12, {LDS_QP:#x}")
    g.e("v_add_u32 v10, s12, v12")
    g.e(f"ds_write_b128 v10, v[{PF}:{PF+3}]")
    g.e(f"ds_write_b128 v10, v[{PF+4}:{PF+7}] offset:1024")
    g.e("s_lshl_b32 s12, s5, 8")
    g.e(f"s_add_u32 s12, s12, {LDS_LS:#x}")
    g.e("v_lshl_add_u32 v10, v2, 2, s12")
    g.e(f"ds_write_b32 v10, v{LRUN}")
    g.e("s_waitcnt lgkmcnt(0)")
    g.e("s_barrier")
    stamp(g, 6)
    g.e(f"v_add_u32 v10, {LDS_QP:#x}, v12")
    def pv_reads(kg):
        t, f = kg >> 1, kg & 1
        PA = 32 + 4 * (kg & 1)
        BB = 40 + 16 * (kg & 1)
        g.e(f"ds_read_b128 v[{PA}:{PA+3}], v10 offset:{kg*1024}")
        for ct in range(4):
            for s in range(2):
                off = (32 * t + 16 * f + 8 * s) * 1024
                base = TA if off < 65536 else TB
                g.e(f"ds_read_b64_tr_b16 v[{BB+4*ct+2*s}:{BB+4*ct+2*s+1}], v{base+4*s+ct} offset:{off % 65536}")
    pv_reads(0)
    for kg in range(8):
        PA = 32 + 4 * (kg & 1)
        BB = 40 + 16 * (kg & 1)
        if kg < 7:
            pv_reads(kg + 1)
            g.e("s_waitcnt lgkmcnt(9)")
        else:
            g.e("s_waitcnt lgkmcnt(0)")
        for ct in range(4):
            c = "0" if kg == 0 else f"a[{OA+16*ct}:{OA+16*ct+15}]"
            g.e(f"v_mfma_f32_32x32x16_bf16 a[{OA+16*ct}:{OA+16*ct+15}], v[{PA}:{PA+3}], v[{BB+4*ct}:{BB+4*ct+3}], {c}")
    stamp(g, 7)
    g.e("s_lshl_b32 s12, s9, 15")
    g.e(f"s_add_u32 s12, s12, {WS_AO:#x}")
    g.e("s_lshl_b32 s13, s5, 8")
    g.e("s_add_u32 s12, s12, s13")
    g.e("v_lshlrev_b32 v10, 12, v6")
    g.e("v_lshl_add_u32 v10, v5, 2, v10")
    g.e("s_nop 7")
    g.e("s_nop 3")
    for r in range(16):
        head = (r & 3) + 8 * (r >> 2)
        g.e(f"s_add_u32 s13, s12, {head*1024}")
        for p in range(2):
            t = 32 + 4 * (r & 3) + 2 * p
            g.e(f"v_accvgpr_read_b32 v{t}, a{OA+32*p+r}")
            g.e(f"v_accvgpr_read_b32 v{t+1}, a{OA+32*p+16+r}")
            g.e(f"v_cvt_pk_bf16_f32 v{t}, v{t}, v{t+1}")
            g.e(f"buffer_store_dword v{t}, v10, s[64:67], s13 offen offset:{128*p} sc1")
    g.e("s_cmp_lg_u32 s5, 0")
    g.e("s_cbranch_scc1 K1A_ML1")
    g.e("v_cmp_gt_u32 vcc, 32, v2")
    g.e("s_and_saveexec_b64 s[68:69], vcc")
    g.e("v_lshlrev_b32 v10, 2, v2")
    g.e(f"v_add_u32 v10, {LDS_LS:#x}, v10")
    for qq in range(8):
        g.e(f"ds_read_b32 v{64+qq}, v10 offset:{128*qq}")
    g.e("s_waitcnt lgkmcnt(0)")
    for qq in range(1, 8):
        g.e(f"v_add_f32 v64, v64, v{64+qq}")
    g.e(f"v_mov_b32 v65, v64")
    g.e(f"v_mov_b32 v64, v{MRUN}")
    g.e("s_lshl_b32 s12, s9, 8")
    g.e(f"s_add_u32 s12, s12, {WS_AML:#x}")
    g.e("v_lshlrev_b32 v10, 3, v2")
    g.e("buffer_store_dwordx2 v[64:65], v10, s[64:67], s12 offen sc1")
    g.e("s_mov_b64 exec, s[68:69]")
    g.lab("K1A_ML1")
    g.e("s_lshl_b32 s71, s10, 2")
    signal(g, "K1A_S2", "s71", DBG_PA0, 1)
    stamp(g, 8)
    if WUVL:
        for i in range(16):
            g.e(f"buffer_load_dwordx4 a[{4*i}:{4*i+3}], v1, s[76:79], s85 offen{NTW_}")
            g.e("s_add_u32 s85, s85, 8192")
    for i in range(16):
        g.e(f"buffer_load_dwordx4 v[{128+4*i}:{128+4*i+3}], v12, s[80:83], s84 offen{NTW_}")
        g.e("s_add_u32 s84, s84, 1024")
    WOL = os.environ.get("WOL", "1") == "1"
    if not WOL:
        for i in range(16):
            g.e(f"buffer_load_dwordx4 v[{192+4*i}:{192+4*i+3}], v12, s[48:51], s86 offen{NTW_}")
            g.e("s_add_u32 s86, s86, 1024")
    g.e("s_lshl_b32 s71, s14, 2")
    poll(g, "K1A_P2", "s71", DBG_PA0, 64)
    stamp(g, 9)
    g.e("v_lshlrev_b32 v10, 8, v2")
    g.e("s_lshl_b32 s6, s7, 3")
    g.e("s_lshl_b32 s13, s14, 14")
    g.e("s_add_u32 s6, s6, s13")
    g.e(f"s_add_u32 s6, s6, {WS_AML:#x}")
    g.e("buffer_load_dwordx2 v[16:17], v10, s[64:67], s6 offen sc1")
    g.e("s_lshl_b32 s6, s7, 10")
    g.e("s_lshl_b32 s13, s5, 19")
    g.e("s_add_u32 s6, s6, s13")
    g.e("s_lshl_b32 s13, s14, 21")
    g.e("s_add_u32 s6, s6, s13")
    g.e(f"s_add_u32 s6, s6, {WS_AO:#x}")
    for s_ in range(16):
        g.e(f"buffer_load_dwordx4 v[{64+4*s_}:{67+4*s_}], v12, s[64:67], s6 offen sc1")
        g.e("s_add_u32 s6, s6, 32768")
    g.e("s_waitcnt vmcnt(16)")
    def allred(reg, op):
        for sh in (1, 2, 4, 8):
            g.e("s_nop 1")
            g.e(f"{op}_dpp v{reg}, v{reg}, v{reg} row_ror:{sh} row_mask:0xf bank_mask:0xf")
        for sw in ("v_permlane16_swap_b32", "v_permlane32_swap_b32"):
            g.e(f"v_mov_b32 v19, v{reg}")
            g.e("s_nop 1")
            g.e(f"{sw} v{reg}, v19")
            g.e("s_nop 1")
            g.e(f"{op} v{reg}, v{reg}, v19")
    g.e("v_mov_b32 v18, v16")
    allred(18, "v_max_f32")
    g.e("v_sub_f32 v16, v16, v18")
    g.e("v_mul_f32 v16, s47, v16")
    g.e("v_exp_f32 v16, v16")
    g.e("s_nop 0")
    g.e("v_mul_f32 v17, v17, v16")
    allred(17, "v_add_f32")
    g.e("v_rcp_f32 v17, v17")
    g.e("s_nop 0")
    g.e("v_mul_f32 v16, v16, v17")
    for r in range(8): g.e(f"v_mov_b32 v{24+r}, 0")
    g.e("s_lshl_b32 s6, s5, 4")
    for s_ in range(16):
        g.e(f"s_add_u32 s13, s6, {s_}")
        g.e("v_readlane_b32 s12, v16, s13")
        g.e(f"s_waitcnt vmcnt({15 - s_})")
        for d in range(4):
            g.e(f"v_lshlrev_b32 v{32+d}, 16, v{64+4*s_+d}")
            g.e(f"v_and_b32 v{36+d}, s46, v{64+4*s_+d}")
        for d in range(4):
            g.e(f"v_fmac_f32 v{24+d}, s12, v{32+d}")
            g.e(f"v_fmac_f32 v{28+d}, s12, v{36+d}")
    if WOL:
        for i in range(16):
            g.e(f"buffer_load_dwordx4 v[{192+4*i}:{192+4*i+3}], v12, s[48:51], s86 offen{NTW_}")
            g.e("s_add_u32 s86, s86, 1024")
    g.e("v_lshrrev_b32 v10, 3, v2")
    g.e("v_and_b32 v11, 7, v2")
    g.e("v_lshlrev_b32 v11, 4, v11")
    g.e("v_lshl_add_u32 v10, v10, 8, v11")
    g.e("s_lshl_b32 s6, s5, 11")
    g.e("v_add_u32 v10, s6, v10")
    g.e("ds_write_b128 v10, v[24:27] offset:40960")
    g.e("ds_write_b128 v10, v[28:31] offset:41088")
    g.e("s_waitcnt lgkmcnt(0)")
    g.e("s_barrier")
    g.e("v_lshlrev_b32 v11, 3, v0")
    for w in range(4):
        g.e(f"ds_read_b64 v[{32+2*w}:{33+2*w}], v11 offset:{40960+2048*w}")
    g.e("s_waitcnt lgkmcnt(0)")
    for w in range(1, 4):
        g.e(f"v_add_f32 v32, v32, v{32+2*w}")
        g.e(f"v_add_f32 v33, v33, v{33+2*w}")
    g.e("ds_write_b64 v11, v[32:33]")
    g.e("s_waitcnt lgkmcnt(0)")
    g.e("s_barrier")
    g.e("s_lshl_b32 s6, s5, 9")
    g.e("v_lshrrev_b32 v10, 3, v2")
    g.e("v_lshlrev_b32 v10, 6, v10")
    g.e("v_add_u32 v10, s6, v10")
    for qq in range(4):
        g.e(f"ds_read_b128 v[{64+4*qq}:{67+4*qq}], v10 offset:{16*qq}")
    for r in range(8): g.e(f"v_mov_b32 v{16+r}, 0")
    g.e("s_waitcnt lgkmcnt(0)")
    gemv16(g, 0, 64, 16)
    g.e("s_lshl_b32 s6, s5, 11")
    g.e("v_lshlrev_b32 v10, 5, v2")
    g.e("v_add_u32 v10, s6, v10")
    g.e("ds_write_b128 v10, v[16:19] offset:4096")
    g.e("ds_write_b128 v10, v[20:23] offset:4112")
    g.e("s_waitcnt lgkmcnt(0)")
    g.e("s_barrier")
    g.e("s_cmp_lg_u32 s5, 0")
    g.e("s_cbranch_scc1 K1A_F2")
    g.e("v_lshlrev_b32 v10, 2, v2")
    for p in range(32):
        g.e(f"ds_read_b32 v{32+p}, v10 offset:{4096+256*p}")
    g.e("s_waitcnt lgkmcnt(0)")
    for p in range(1, 32):
        g.e(f"v_add_f32 v32, v32, v{32+p}")
    g.e("v_cvt_pk_bf16_f32 v32, v32, v32")
    g.e("v_and_b32 v32, s46, v32")
    g.e("ds_write_b32 v10, v32 offset:20480")
    g.lab("K1A_F2")
    g.e("s_waitcnt lgkmcnt(0)")
    g.e("s_barrier")
    g.e("s_lshl_b32 s87, s7, 1")
    g.e("s_add_u32 s87, s87, s15")
    g.e("s_lshl_b32 s87, s87, 11")
    g.e("s_lshl_b32 s13, s14, 17")
    g.e("s_add_u32 s87, s87, s13")
    g.e(f"s_add_u32 s87, s87, {WS_Y:#x}")
    proj16(g, 128, 20480, 24576, "s87")
    stamp(g, 10)
    poll(g, "K1A_P3", "s70", DBG_H, 1024)
    g.e("s_cmp_lg_u32 s5, 0")
    g.e("s_cbranch_scc1 K1A_F3")
    g.e("s_lshl_b32 s6, s14, 5")
    g.e("s_add_u32 s6, s6, s7")
    g.e("s_lshl_b32 s6, s6, 11")
    g.e(f"s_add_u32 s6, s6, {WS_BP:#x}")
    g.e("s_lshl_b32 s13, s15, 8")
    g.e("v_lshlrev_b32 v10, 2, v2")
    g.e("v_add_u32 v11, s13, v10")
    for sp in range(2):
        g.e(f"buffer_load_dword v{32+sp}, v11, s[64:67], s6 offen offset:{1024*sp} sc1")
        g.e(f"buffer_load_dwordx2 v[{36+2*sp}:{37+2*sp}], off, s[64:67], s6 offset:{1024*sp+512} sc1")
    g.e("s_waitcnt vmcnt(0)")
    g.e("v_max_f32 v40, v36, v38")
    for sp in range(2):
        g.e(f"v_sub_f32 v{36+2*sp}, v{36+2*sp}, v40")
        g.e(f"v_mul_f32 v{36+2*sp}, s47, v{36+2*sp}")
        g.e(f"v_exp_f32 v{36+2*sp}, v{36+2*sp}")
    g.e("s_nop 0")
    g.e("v_mul_f32 v41, v36, v37")
    g.e("v_fmac_f32 v41, v38, v39")
    g.e("v_mul_f32 v42, v36, v32")
    g.e("v_fmac_f32 v42, v38, v33")
    g.e("v_rcp_f32 v41, v41")
    g.e("s_nop 0")
    g.e("v_mul_f32 v42, v42, v41")
    g.e("v_cvt_pk_bf16_f32 v42, v42, v42")
    g.e("v_and_b32 v42, s46, v42")
    g.e("ds_write_b32 v10, v42 offset:20992")
    g.lab("K1A_F3")
    g.e("s_waitcnt vmcnt(0) lgkmcnt(0)")
    g.e("s_barrier")
    g.e("s_add_u32 s87, s87, 0x40000")
    proj16(g, 192, 20992, 32768, "s87")
    stamp(g, 11)

def k2(g):
    g.lab("k2_kernel")
    g.e("s_cmp_ge_u32 s2, 32")
    g.e("s_cbranch_scc1 K2_END")
    load_kernargs(g)
    g.e("v_lshrrev_b32 v1, 6, v0")
    g.e("v_and_b32 v2, 63, v0")
    g.e("v_readfirstlane_b32 s5, v1")
    g.e("s_lshr_b32 s8, s2, 4")
    g.e("s_bfe_u32 s9, s2, 0x10003")
    g.e("s_and_b32 s10, s2, 7")
    g.e("s_lshl_b32 s6, s9, 1")
    g.e("s_add_u32 s6, s6, s8")
    g.e("s_lshl_b32 s6, s6, 17")
    g.e("s_lshl_b32 s11, s5, 15")
    g.e("s_add_u32 s6, s6, s11")
    g.e("s_lshl_b32 s12, s10, 8")
    g.e("s_add_u32 s6, s6, s12")
    g.e(f"s_add_u32 s6, s6, {WS_Y:#x}")
    g.e("v_lshlrev_b32 v10, 2, v2")
    g.e("s_waitcnt lgkmcnt(0)")
    srd(g, 64, P_WS, WS_SIZE)
    srd(g, 48, P_OUT, 4096)
    for h in range(16):
        g.e(f"buffer_load_dword v{32+h}, v10, s[64:67], s6 offen")
        g.e("s_add_u32 s6, s6, 2048")
    g.e("s_waitcnt vmcnt(0)")
    for h in range(1, 16):
        g.e(f"v_add_f32 v32, v32, v{32+h}")
    g.e("v_lshlrev_b32 v11, 2, v0")
    g.e("ds_write_b32 v11, v32")
    g.e("s_waitcnt lgkmcnt(0)")
    g.e("s_barrier")
    g.e("s_cmp_lg_u32 s5, 0")
    g.e("s_cbranch_scc1 K2_END")
    for w in range(4):
        g.e(f"ds_read_b32 v{20+w}, v10 offset:{256*w}")
    g.e("s_waitcnt lgkmcnt(0)")
    g.e("v_add_f32 v20, v20, v21")
    g.e("v_add_f32 v22, v22, v23")
    g.e("v_add_f32 v20, v20, v22")
    g.e("v_cvt_pk_bf16_f32 v20, v20, v20")
    g.e("s_lshl_b32 s6, s2, 7")
    g.e("v_lshlrev_b32 v11, 1, v2")
    g.e("buffer_store_short v20, v11, s[48:51], s6 offen")
    g.lab("K2_END")
    g.e("s_endpgm")


def k0(g):
    g.lab("k0_kernel")
    g.e("s_cmp_ge_u32 s2, 64")
    g.e("s_cbranch_scc1 K0_END")
    load_kernargs(g)
    g.e("s_waitcnt lgkmcnt(0)")
    srd(g, 48, P_K, 128 << 20)
    srd(g, 52, P_V, 128 << 20)
    srd(g, 56, P_CKV, 16 << 20)
    g.e("v_and_b32 v1, 63, v0")
    g.e("v_lshlrev_b32 v2, 21, v1")
    g.e("v_add_u32 v2, 0x180000, v2")
    g.e("v_lshrrev_b32 v3, 6, v0")
    g.e("v_lshl_add_u32 v2, v3, 17, v2")
    g.e("buffer_load_dword v8, v2, s[48:51], 0 offen")
    g.e("buffer_load_dword v9, v2, s[52:55], 0 offen")
    g.e("v_lshlrev_b32 v4, 16, v0")
    g.e("buffer_load_dword v10, v4, s[56:59], 0 offen")
    g.e("v_lshlrev_b32 v5, 14, v0")
    for i, p in enumerate((P_WQA, P_WUK, P_WUV, P_WOA, P_WQB, P_WOB)):
        srd(g, 60, p, 4 << 20)
        g.e(f"buffer_load_dword v{11+i}, v5, s[60:63], 0 offen")
    g.e("s_waitcnt vmcnt(0)")
    g.lab("K0_END")
    g.e("s_endpgm")

def desc(name, vg, acc):
    return f""".amdhsa_kernel {name}
  .amdhsa_next_free_vgpr {vg}
  .amdhsa_next_free_sgpr 102
  .amdhsa_accum_offset {acc}
  .amdhsa_group_segment_fixed_size 0
  .amdhsa_kernarg_size 112
  .amdhsa_user_sgpr_count 2
  .amdhsa_user_sgpr_kernarg_segment_ptr 1
  .amdhsa_system_sgpr_workgroup_id_x 1
.end_amdhsa_kernel
"""

def main():
    out = HEADER
    K0 = os.environ.get("K0", "0") == "1"
    if K0: out += "; @launch kernel=k0_kernel grid=(64,1,1) block=(256,1,1) lds=0\n"
    out += f"; @launch kernel=k1_kernel grid=(256,1,1) block=(256,1,1) lds={LDS_TOTAL}\n"
    out += "; @launch kernel=k2_kernel grid=(32,1,1) block=(256,1,1) lds=1024\n"
    out += '.amdgcn_target "amdgcn-amd-amdhsa--gfx950"\n.text\n'
    for nm, fn in (("k1_kernel", k1), ("k2_kernel", k2)) + ((("k0_kernel", k0),) if K0 else ()):
        g = G(); fn(g)
        out += f".globl {nm}\n.p2align 8\n.type {nm},@function\n" + g.text()
    out += '.section .rodata,"a"\n.p2align 6\n'
    out += desc("k1_kernel", 512, 256) + ".p2align 6\n" + desc("k2_kernel", 128, 128) + ((".p2align 6\n" + desc("k0_kernel", 64, 64)) if K0 else "")
    dst = sys.argv[1] if len(sys.argv) > 1 else f"cdna_kernels/{NAME}.s"
    open(dst, "w").write(out)
    print("wrote", dst, len(out))
main()
```
